```python
import torch

def _softmax(x, axis=-1):
    return torch.softmax(x, dim=axis)

def _gelu(x):
    return torch.nn.functional.gelu(x, approximate='tanh')

def _silu(x):
    return torch.nn.functional.silu(x)

def _sigmoid(x):
    return torch.sigmoid(x)

def _layernorm(x, axis=-1, eps=1e-05):
    m = x.mean(dim=axis, keepdim=True)
    v = x.var(dim=axis, keepdim=True, unbiased=False)
    return (x - m) / torch.sqrt(v + eps)

def _scatter_add(tgt, idx, src, axis=0):
    return tgt.clone().index_add_(axis, idx, src)

def _segment_sum(src, seg, n):
    out = torch.zeros((n,) + src.shape[1:], dtype=src.dtype)
    return out.index_add_(0, seg, src)

def _pad(x, pw):
    flat = tuple((v for pair in reversed(pw) for v in pair))
    return torch.nn.functional.pad(x, flat)
kernel_name = 'standalone__tree_speculative_verify_tree_attention_over_candidate_token_tree__decode'

def setup_inputs():

    _w = lambda a: (lambda t: t.to(torch.bfloat16) if t.is_floating_point() else t)(torch.as_tensor(a))
    B, Hq, Hkv, T, C, D = (1, 32, 32, 1, 8192, 192)
    tree_mask = torch.zeros((B, T, T), dtype=float)
    for b in range(B):
        parent = torch.zeros(T, dtype=torch.int64)
        for i in range(1, T):
            parent[i] = int(torch.randint(0, i, (1,)).item())
        for i in range(T):
            j = i
            tree_mask[b, i, j] = 1.0
            while j > 0:
                j = parent[j]
                tree_mask[b, i, j] = 1.0
    return {'q': _w((lambda *s: torch.randn(*s, dtype=torch.bfloat16) * 0.8)(B, Hq, T, D)), 'k_cache': _w((lambda *s: torch.randn(*s, dtype=torch.bfloat16) * 0.8)(B, Hkv, C, D)), 'v_cache': _w((lambda *s: torch.randn(*s, dtype=torch.bfloat16) * 0.05)(B, Hkv, C, D)), 'k_tree': _w((lambda *s: torch.randn(*s, dtype=torch.bfloat16) * 0.8)(B, Hkv, T, D)), 'v_tree': _w((lambda *s: torch.randn(*s, dtype=torch.bfloat16) * 0.05)(B, Hkv, T, D)), 'tree_mask': _w(tree_mask)}

def reference(q, k_cache, v_cache, k_tree, v_tree, tree_mask):
    B, Hq, T, D = q.shape
    Hkv, C = (k_cache.shape[1], k_cache.shape[2])
    rep = Hq // Hkv
    kc = (lambda x, n, axis: torch.repeat_interleave(x, n, dim=axis))(k_cache, rep, axis=1)
    vc = (lambda x, n, axis: torch.repeat_interleave(x, n, dim=axis))(v_cache, rep, axis=1)
    kt = (lambda x, n, axis: torch.repeat_interleave(x, n, dim=axis))(k_tree, rep, axis=1)
    vt = (lambda x, n, axis: torch.repeat_interleave(x, n, dim=axis))(v_tree, rep, axis=1)
    k = torch.concatenate([kc, kt], axis=2)
    v = torch.concatenate([vc, vt], axis=2)
    scale = D ** (-0.5)
    scores = torch.einsum('bhqd,bhkd->bhqk', q, k) * scale
    ctx_mask = torch.ones((B, 1, T, C), dtype=scores.dtype)
    tm = tree_mask[:, None, :, :].clone()
    full_mask = torch.concatenate([ctx_mask, tm], axis=-1)
    scores = scores + (1.0 - full_mask) * -1000000000.0
    p = _softmax(scores, axis=-1)
    return torch.einsum('bhqk,bhkd->bhqd', p, v)
```

```python
import sys, math
NAME = "standalone__tree_speculative_verify_tree_attention_over_candidate_token_tree__decode"

def gen(NW=4, SPLITS=8, R=13, LF="nt", inter=True, two=False, lds_pad=0, stamp=False, PF="sc1", vgpr_cap=None, kfirst=True):
    H, C, D = 32, 8192, 192
    ROW = D * 2
    HEADB = C * ROW
    KEYS_WG = C // SPLITS
    CHUNK = KEYS_WG * ROW
    G = KEYS_WG // NW // 8
    NWG = H * SPLITS
    c_log2 = (D ** -0.5) * math.log2(math.e)
    L = []
    e = L.append
    vQ = 4
    vS = vQ + 12
    vACC = vS + G
    assert vACC % 2 == 0
    vKT = (vACC + 24 + 3) // 4 * 4
    vVT = vKT + 12
    vMK = vVT + 3
    vOO = vMK + 1
    vT = vOO + 3
    vT += vT % 2
    vLSE = vT + 12
    vST = vLSE + 1
    vRING = (vST + 1 + 3) // 4 * 4
    nv = vRING + 12 * R
    assert nv <= 256, nv
    vOFF = 1; vC16 = 2; vW = 3
    sQ, sK, sV, sKT, sVT, sMK, sOUT, sDBG, sWS = 4, 6, 8, 10, 12, 14, 16, 18, 20
    rK, rV, rQ, rKT, rVT, rMK, rOUT, rWS, rDBG = 24, 28, 32, 36, 40, 44, 48, 52, 56
    sHEAD, sSPL, sT0, sT1, sOK, sC, sWID, sMASKHI = 60, 61, 62, 63, 64, 65, 66, 67
    sNEG = 68
    queue = []
    def issue(tag): queue.append(tag)
    def wait_for(tag):
        idx = max(i for i, t in enumerate(queue) if t == tag)
        n = len(queue) - 1 - idx
        assert n <= 63
        e(f"  s_waitcnt vmcnt({n})")
    kname = NAME + "_kernel"
    def header(kn):
        e(f".globl {kn}"); e(".p2align 8"); e(f".type {kn},@function"); e(f"{kn}:")
    def srd(r, slo, nbytes, addreg=None):
        if addreg is None:
            e(f"  s_mov_b32 s{r}, s{slo}"); e(f"  s_mov_b32 s{r+1}, s{slo+1}")
        else:
            e(f"  s_add_u32 s{r}, s{slo}, s{addreg}"); e(f"  s_addc_u32 s{r+1}, s{slo+1}, 0")
        e(f"  s_mov_b32 s{r+2}, {nbytes}"); e(f"  s_mov_b32 s{r+3}, 0x20000")
    def out_offsets():
        e(f"  v_and_b32 v{vT}, 63, v0")
        e(f"  v_lshrrev_b32 v{vT+1}, 3, v{vT}")
        e(f"  v_mul_u32_u24 v{vT+1}, 3, v{vT+1}")
        e(f"  v_and_b32 v{vT+2}, 7, v{vT}")
        e(f"  v_lshlrev_b32 v{vT+2}, 4, v{vT+2}")
        for i in range(3):
            e(f"  v_add_u32 v{vT+3}, {i}, v{vT+1}")
            e(f"  v_lshrrev_b32 v{vT+4}, 3, v{vT+3}")
            e(f"  v_lshlrev_b32 v{vT+4}, 7, v{vT+4}")
            e(f"  v_and_b32 v{vT+3}, 7, v{vT+3}")
            e(f"  v_lshlrev_b32 v{vT+3}, 1, v{vT+3}")
            e(f"  v_add3_u32 v{vOO+i}, v{vT+4}, v{vT+3}, v{vT+2}")
    def dots(dst, src):
        for i in range(12):
            c = "0" if i == 0 else f"v{dst}"
            e(f"  v_dot2_f32_bf16 v{dst}, v{src+i}, v{vQ+i}, {c}")
        e("  s_nop 2")
        e(f"  v_add_f32_dpp v{dst}, v{dst}, v{dst} quad_perm:[1,0,3,2] row_mask:0xf bank_mask:0xf")
        e("  s_nop 1")
        e(f"  v_add_f32_dpp v{dst}, v{dst}, v{dst} quad_perm:[2,3,0,1] row_mask:0xf bank_mask:0xf")
        e("  s_nop 1")
        e(f"  v_add_f32_dpp v{dst}, v{dst}, v{dst} row_half_mirror row_mask:0xf bank_mask:0xf")
    def allred(x, t, op):
        e("  s_nop 1")
        e(f"  {op}_dpp v{x}, v{x}, v{x} row_ror:8 row_mask:0xf bank_mask:0xf")
        e(f"  v_mov_b32 v{t}, v{x}")
        e("  s_nop 1")
        e(f"  v_permlane16_swap_b32 v{x}, v{t}")
        e("  s_nop 1")
        e(f"  {op} v{x}, v{x}, v{t}")
        e(f"  v_mov_b32 v{t}, v{x}")
        e("  s_nop 1")
        e(f"  v_permlane32_swap_b32 v{x}, v{t}")
        e("  s_nop 1")
        e(f"  {op} v{x}, v{x}, v{t}")
    def combine(parts, n, o):
        mx, sm, w = vT, vT + 1, vT + 2
        e(f"  v_max_f32 v{mx}, v{parts[0]+3}, v{parts[1]+3}")
        for p in parts[2:]:
            e(f"  v_max_f32 v{mx}, v{mx}, v{p+3}")
        for p in parts:
            e(f"  v_sub_f32 v{p+3}, v{p+3}, v{mx}")
        for p in parts:
            e(f"  v_exp_f32 v{p+3}, v{p+3}")
        e("  s_nop 0")
        e(f"  v_add_f32 v{sm}, v{parts[0]+3}, v{parts[1]+3}")
        for p in parts[2:]:
            e(f"  v_add_f32 v{sm}, v{sm}, v{p+3}")
        e(f"  v_rcp_f32 v{w}, v{sm}")
        e(f"  v_log_f32 v{sm}, v{sm}")
        for i in range(3):
            e(f"  v_mul_f32 v{vT+4+i}, v{parts[0]+i}, v{parts[0]+3}")
        for p in parts[1:]:
            for i in range(3):
                e(f"  v_fmac_f32 v{vT+4+i}, v{p+i}, v{p+3}")
        for i in range(3):
            e(f"  v_mul_f32 v{o+i}, v{vT+4+i}, v{w}")
        e(f"  v_add_f32 v{o+3}, v{sm}, v{mx}")
    def final_store(o):
        e(f"  v_cvt_pk_bf16_f32 v{o}, v{o}, v{o+1}")
        e(f"  v_cvt_pk_bf16_f32 v{o+2}, v{o+2}, v{o+2}")
        e(f"  buffer_store_short v{o}, v{vOO}, s[{rOUT}:{rOUT+3}], 0 offen")
        e(f"  buffer_store_short_d16_hi v{o}, v{vOO+1}, s[{rOUT}:{rOUT+3}], 0 offen")
        e(f"  buffer_store_short v{o+2}, v{vOO+2}, s[{rOUT}:{rOUT+3}], 0 offen")

    header(kname)
    e(f"  s_cmp_ge_u32 s2, {NWG}")
    e("  s_cbranch_scc1 L_end")
    e("  s_load_dwordx16 s[4:19], s[0:1], 0")
    e("  s_load_dwordx2 s[20:21], s[0:1], 64")
    if stamp:
        e("  s_memrealtime s[70:71]")
    lg = int(math.log2(SPLITS))
    e(f"  s_lshr_b32 s{sHEAD}, s2, {lg}")
    e(f"  s_and_b32 s{sSPL}, s2, {SPLITS-1}")
    e(f"  s_mul_i32 s{sT0}, s2, {CHUNK}")
    e(f"  s_mul_i32 s{sT1}, s{sHEAD}, {ROW}")
    e(f"  v_lshrrev_b32 v{vW}, 6, v0")
    e(f"  v_and_b32 v{vC16}, 7, v0")
    e(f"  v_lshlrev_b32 v{vC16}, 4, v{vC16}")
    e(f"  v_bfe_u32 v{vOFF}, v0, 3, 3")
    e(f"  v_mul_u32_u24 v{vOFF}, {ROW}, v{vOFF}")
    e(f"  v_add_u32 v{vOFF}, v{vOFF}, v{vC16}")
    wstride = 3072 if inter else G * 3072
    gstride = NW * 3072 if inter else 3072
    e(f"  s_mov_b32 s{sC}, {wstride}")
    e(f"  v_mul_lo_u32 v{vT}, v{vW}, s{sC}")
    e(f"  v_add_u32 v{vOFF}, v{vOFF}, v{vT}")
    e(f"  v_readfirstlane_b32 s{sWID}, v{vW}")
    out_offsets()
    e(f"  s_mov_b32 s{sMASKHI}, 0xffff0000")
    e("  s_waitcnt lgkmcnt(0)")
    srd(rK, sK, CHUNK, sT0)
    srd(rQ, sQ, ROW, sT1)
    for j in range(3):
        e(f"  buffer_load_dwordx4 v[{vQ+4*j}:{vQ+4*j+3}], v{vC16}, s[{rQ}:{rQ+3}], 0 offen offset:{j*128}")
        issue('q')
    def item_issue(t):
        slot = vRING + 12 * (t % R)
        isK = t < G
        g = t if isK else t - G
        r = rK if isK else rV
        off = g * gstride
        if off == 0:
            so = "0"
        else:
            e(f"  s_mov_b32 s{sOK}, {off}"); so = f"s{sOK}"
        for j in range(3):
            e(f"  buffer_load_dwordx4 v[{slot+4*j}:{slot+4*j+3}], v{vOFF}, s[{r}:{r+3}], {so} offen offset:{j*128} {LF}")
            issue(('it', t))
    npro = min(R, 2 * G)
    for t in range(min(npro, G)):
        item_issue(t)
    srd(rV, sV, CHUNK, sT0)
    for t in range(G, npro):
        item_issue(t)
    srd(rKT, sKT, ROW, sT1)
    srd(rVT, sVT, ROW, sT1)
    srd(rMK, sMK, 2)
    srd(rOUT, sOUT, ROW, sT1)
    e(f"  s_lshl_b32 s{sT0}, s{sHEAD}, {10+lg}")
    srd(rWS, sWS, SPLITS * 1024, sT0)
    def tree_issue():
        for j in range(3):
            e(f"  buffer_load_dwordx4 v[{vKT+4*j}:{vKT+4*j+3}], v{vC16}, s[{rKT}:{rKT+3}], 0 offen offset:{j*128}")
            issue('tree')
        for i in range(3):
            e(f"  buffer_load_ushort v{vVT+i}, v{vOO+i}, s[{rVT}:{rVT+3}], 0 offen")
            issue('tree')
        e(f"  buffer_load_ushort v{vMK}, off, s[{rMK}:{rMK+3}], 0")
        issue('tree')
    def tree_process():
        wait_for('tree')
        dots(vST, vKT)
        for i in range(3):
            e(f"  v_lshlrev_b32 v{vVT+i}, 16, v{vVT+i}")
        e(f"  v_lshlrev_b32 v{vMK}, 16, v{vMK}")
        e(f"  v_sub_f32 v{vMK}, 1.0, v{vMK}")
        e(f"  s_mov_b32 s{sNEG}, {f2h(-1.0e9 * math.log2(math.e))}")
        e(f"  v_mul_f32 v{vMK}, s{sNEG}, v{vMK}")
        e(f"  v_fma_f32 v{vMK}, v{vST}, s{sC}, v{vMK}")
    def softmax_mid():
        mx, t, l = vT, vT + 1, vT + 2
        e(f"  v_max_f32 v{mx}, v{vS}, v{vS+1}")
        for i in range(2, G, 2):
            e(f"  v_max3_f32 v{mx}, v{mx}, v{vS+i}, v{vS+i+1}")
        allred(mx, t, "v_max_f32")
        e(f"  s_mov_b32 s{sC}, {f2h(c_log2)}")
        e(f"  v_mul_f32 v{mx}, s{sC}, v{mx}")
        for i in range(G):
            e(f"  v_fma_f32 v{vS+i}, v{vS+i}, s{sC}, -v{mx}")
        for i in range(G):
            e(f"  v_exp_f32 v{vS+i}, v{vS+i}")
        e("  s_nop 0")
        e(f"  v_add_f32 v{l}, v{vS}, v{vS+1}")
        for i in range(2, G):
            e(f"  v_add_f32 v{l}, v{l}, v{vS+i}")
        allred(l, t, "v_add_f32")
        e(f"  v_rcp_f32 v{t}, v{l}")
        e(f"  v_log_f32 v{l}, v{l}")
        e("  s_nop 0")
        for i in range(G):
            e(f"  v_mul_f32 v{vS+i}, v{vS+i}, v{t}")
        e(f"  v_add_f32 v{vLSE}, v{l}, v{mx}")
    tree_at_issue = G - 1
    tree_at_proc = min(2 * G - 1, tree_at_issue + R + 1)
    for t in range(2 * G):
        slot = vRING + 12 * (t % R)
        wait_for(('it', t))
        if t < G:
            dots(vS + t, slot)
        else:
            g = t - G
            if g == 0:
                softmax_mid()
            p = vS + g
            pe = p - (p % 2)
            sel = "op_sel_hi:[1,0,1]" if p % 2 == 0 else "op_sel:[0,1,0] op_sel_hi:[1,1,1]"
            for i in range(12):
                tt = vT + 4 + 2 * (i % 4)
                e(f"  v_lshlrev_b32 v{tt}, 16, v{slot+i}")
                e(f"  v_and_b32 v{tt+1}, s{sMASKHI}, v{slot+i}")
                if g == 0:
                    e(f"  v_pk_mul_f32 v[{vACC+2*i}:{vACC+2*i+1}], v[{tt}:{tt+1}], v[{pe}:{pe+1}] " + sel.replace(",1]", "]").replace(",0]", "]") if False else
                      f"  v_pk_mul_f32 v[{vACC+2*i}:{vACC+2*i+1}], v[{tt}:{tt+1}], v[{pe}:{pe+1}] " + ("op_sel_hi:[1,0]" if p % 2 == 0 else "op_sel:[0,1] op_sel_hi:[1,1]"))
                else:
                    e(f"  v_pk_fma_f32 v[{vACC+2*i}:{vACC+2*i+1}], v[{tt}:{tt+1}], v[{pe}:{pe+1}], v[{vACC+2*i}:{vACC+2*i+1}] {sel}")
        if t + R < 2 * G:
            item_issue(t + R)
        if t == tree_at_issue:
            tree_issue()
        if t == tree_at_proc:
            tree_process()
    A = vACC
    e("  s_nop 1")
    for i in range(12):
        e(f"  v_permlane32_swap_b32 v{A+i}, v{A+i+12}")
    e("  s_nop 1")
    for i in range(12):
        e(f"  v_add_f32 v{A+i}, v{A+i}, v{A+i+12}")
    e("  s_nop 1")
    for i in range(6):
        e(f"  v_permlane16_swap_b32 v{A+i}, v{A+i+6}")
    e("  s_nop 1")
    for i in range(6):
        e(f"  v_add_f32 v{A+i}, v{A+i}, v{A+i+6}")
    Y = vKT
    e("  s_nop 1")
    for i in range(3):
        e(f"  v_add_f32_dpp v{Y+i}, v{A+i}, v{A+i} row_ror:8 row_mask:0xf bank_mask:0x3")
    for i in range(3):
        e(f"  v_add_f32_dpp v{Y+i}, v{A+i+3}, v{A+i+3} row_ror:8 row_mask:0xf bank_mask:0xc")
    e(f"  v_mov_b32 v{Y+3}, v{vLSE}")
    e(f"  v_lshlrev_b32 v{vT}, 4, v0")
    e(f"  ds_write_b128 v{vT}, v[{Y}:{Y+3}]")
    e("  s_waitcnt lgkmcnt(0)")
    e("  s_barrier")
    e(f"  s_cmp_lg_u32 s{sWID}, 0")
    e("  s_cbranch_scc1 L_end")
    P = vRING
    for w in range(NW):
        e(f"  ds_read_b128 v[{P+4*w}:{P+4*w+3}], v{vT} offset:{w*1024}")
    e("  s_waitcnt lgkmcnt(0)")
    combine([P + 4 * w for w in range(NW)], NW, Y)
    e(f"  s_lshl_b32 s{sOK}, s{sSPL}, 10")
    e(f"  v_lshlrev_b32 v{vT+8}, 4, v0")
    if two:
        e(f"  buffer_store_dwordx4 v[{Y}:{Y+3}], v{vT+8}, s[{rWS}:{rWS+3}], s{sOK} offen")
        e(f"  s_cmp_lg_u32 s{sSPL}, 0")
        e("  s_cbranch_scc1 L_end")
        e(f"  s_lshl_b32 s{sT0}, s{sHEAD}, 10")
        e(f"  s_add_u32 s{sT0}, s{sT0}, {NWG*1024}")
        srd(rDBG, sWS, 1024, sT0)
        for i in range(4):
            e(f"  v_mov_b32 v{P+i}, v{vVT+i}")
        e(f"  buffer_store_dwordx4 v[{P}:{P+3}], v{vT+8}, s[{rDBG}:{rDBG+3}], 0 offen")
        e("L_end:")
        e("  s_endpgm")
    else:
        e(f"  buffer_store_dwordx4 v[{Y}:{Y+3}], v{vT+8}, s[{rWS}:{rWS+3}], s{sOK} offen {PF}")
        srd(rDBG, sDBG, 256)
        e(f"  s_lshl_b32 s{sT0}, s{sHEAD}, 2")
        e(f"  v_mov_b32 v{vT+9}, s{sT0}")
        e(f"  v_mov_b32 v{vT+10}, 1")
        e("  s_waitcnt vmcnt(0)")
        e("  s_mov_b64 exec, 1")
        e(f"  buffer_atomic_add v{vT+10}, v{vT+9}, s[{rDBG}:{rDBG+3}], 0 offen sc0")
        e("  s_waitcnt vmcnt(0)")
        e(f"  v_readfirstlane_b32 s{sT0}, v{vT+10}")
        e("  s_mov_b64 exec, -1")
        e(f"  s_cmp_lg_u32 s{sT0}, {SPLITS-1}")
        e("  s_cbranch_scc1 L_fin")
        for s in range(SPLITS):
            e(f"  buffer_load_dwordx4 v[{P+4*s}:{P+4*s+3}], v{vT+8}, s[{rWS}:{rWS+3}], 0 offen offset:{(s%4)*1024} {PF}" if s < 4 else
              f"  buffer_load_dwordx4 v[{P+4*s}:{P+4*s+3}], v{vT+8}, s[{rWS}:{rWS+3}], s{sOK} offen offset:{(s%4)*1024} {PF}")
            if s % 4 == 3 and s + 1 < SPLITS:
                e(f"  s_mov_b32 s{sOK}, {(s+1)*1024}")
        PT = P + 4 * SPLITS
        for i in range(4):
            e(f"  v_mov_b32 v{PT+i}, v{vVT+i}")
        e("  s_waitcnt vmcnt(0)")
        combine([P + 4 * s for s in range(SPLITS + 1)], SPLITS + 1, Y)
        final_store(Y)
        e("L_fin:")
        if stamp:
            e("  s_memrealtime s[72:73]")
            e(f"  s_lshl_b32 s{sT0}, s2, 4")
            e(f"  s_add_u32 s{sT0}, s{sT0}, 0x100000")
            srd(rDBG, sWS, 16, sT0)
            e("  s_getreg_b32 s74, hwreg(HW_REG_XCC_ID)")
            e("  s_waitcnt lgkmcnt(0)")
            e(f"  v_mov_b32 v{P}, s70"); e(f"  v_mov_b32 v{P+1}, s72"); e(f"  v_mov_b32 v{P+2}, s74"); e(f"  v_mov_b32 v{P+3}, s71")
            e("  s_mov_b64 exec, 1")
            e(f"  buffer_store_dwordx4 v[{P}:{P+3}], off, s[{rDBG}:{rDBG+3}], 0")
        e("L_end:")
        e("  s_endpgm")
    kernels = [(kname, nv)]
    if two:
        k2 = NAME + "_comb_kernel"
        header(k2)
        e(f"  s_cmp_ge_u32 s2, {H}")
        e("  s_cbranch_scc1 L_end2")
        e("  s_load_dwordx2 s[16:17], s[0:1], 48")
        e("  s_load_dwordx2 s[20:21], s[0:1], 64")
        e(f"  s_mul_i32 s{sT1}, s2, {ROW}")
        e(f"  s_lshl_b32 s{sT0}, s2, {10+lg}")
        out_offsets()
        e(f"  v_lshlrev_b32 v{vT+8}, 4, v0")
        e("  s_waitcnt lgkmcnt(0)")
        srd(rWS, sWS, SPLITS * 1024, sT0)
        P = vRING
        for s in range(SPLITS):
            if s % 4 == 0:
                e(f"  s_mov_b32 s{sOK}, {s*1024}")
            e(f"  buffer_load_dwordx4 v[{P+4*s}:{P+4*s+3}], v{vT+8}, s[{rWS}:{rWS+3}], s{sOK} offen offset:{(s%4)*1024}")
        e(f"  s_lshl_b32 s{sT0}, s2, 10")
        e(f"  s_add_u32 s{sT0}, s{sT0}, {NWG*1024}")
        srd(rDBG, sWS, 1024, sT0)
        PT = P + 4 * SPLITS
        e(f"  buffer_load_dwordx4 v[{PT}:{PT+3}], v{vT+8}, s[{rDBG}:{rDBG+3}], 0 offen")
        srd(rOUT, sOUT, ROW, sT1)
        e("  s_waitcnt vmcnt(0)")
        combine([P + 4 * s for s in range(SPLITS + 1)], SPLITS + 1, Y)
        final_store(Y)
        e("L_end2:")
        e("  s_endpgm")
        kernels.append((k2, nv))
    lds = max(NW * 1024, lds_pad)
    hdr = open("cdna_kernels/" + NAME + ".s.ref").read().split("; Override launch")[0]
    out = [hdr.rstrip("\n")]
    if two:
        out.append(f"; @launch kernel={kname} grid=({NWG},1,1) block=({NW*64},1,1) lds={lds}")
        out.append(f"; @launch kernel={kernels[1][0]} grid=({H},1,1) block=(64,1,1) lds=0")
    else:
        out.append(f"; @launch grid=({NWG},1,1) block=({NW*64},1,1) lds={lds}")
    out.append('.amdgcn_target "amdgcn-amd-amdhsa--gfx950"')
    out.append(".text")
    out += L
    out.append('.section .rodata,"a"')
    for kn, n in kernels:
        n = vgpr_cap or n
        out.append(".p2align 6")
        out.append(f".amdhsa_kernel {kn}")
        out.append(f"  .amdhsa_next_free_vgpr {n}")
        out.append(f"  .amdhsa_next_free_sgpr 80")
        out.append(f"  .amdhsa_accum_offset {(n+3)//4*4}")
        out.append("  .amdhsa_group_segment_fixed_size 0")
        out.append("  .amdhsa_kernarg_size 72")
        out.append("  .amdhsa_user_sgpr_count 2")
        out.append("  .amdhsa_user_sgpr_kernarg_segment_ptr 1")
        out.append("  .amdhsa_system_sgpr_workgroup_id_x 1")
        out.append(".end_amdhsa_kernel")
    return "\n".join(out) + "\n"

import struct
def f2h(x):
    return "0x%08x" % struct.unpack("<I", struct.pack("<f", x))[0]

if __name__ == "__main__":
    import ast
    outp = sys.argv[1]
    kw = {}
    for a in sys.argv[2:]:
        k, v = a.split("=", 1)
        try: v = ast.literal_eval(v)
        except Exception: pass
        kw[k] = v
    open(outp, "w").write(gen(**kw))
```

```python
import sys, math
NAME = "standalone__tree_speculative_verify_tree_attention_over_candidate_token_tree__decode"

def gen(NW=4, SPLITS=8, R=12, LF="nt", LFV=None, inter=True, two=False, lds_pad=0, stamp=False, PF="sc1", vgpr_cap=None, kfirst=True):
    if LFV is None: LFV = LF
    H, C, D = 32, 8192, 192
    ROW = D * 2
    HEADB = C * ROW
    KEYS_WG = C // SPLITS
    CHUNK = KEYS_WG * ROW
    G = KEYS_WG // NW // 8
    NWG = H * SPLITS
    c_log2 = (D ** -0.5) * math.log2(math.e)
    L = []
    e = L.append
    vQ = 4
    vS = vQ + 12
    vACC = vS + G
    assert vACC % 2 == 0
    vKT = (vACC + 24 + 3) // 4 * 4
    vVT = vKT + 12
    vMK = vVT + 3
    vOO = vMK + 1
    vT = vOO + 3
    vT += vT % 2
    vLSE = vT + 12
    vST = vLSE + 1
    vRING = (vST + 1 + 3) // 4 * 4
    nv = vRING + 12 * R
    assert nv <= 256, nv
    vOFF = 1; vC16 = 2; vW = 3
    sQ, sK, sV, sKT, sVT, sMK, sOUT, sDBG, sWS = 4, 6, 8, 10, 12, 14, 16, 18, 20
    rK, rV, rQ, rKT, rVT, rMK, rOUT, rWS, rDBG = 24, 28, 32, 36, 40, 44, 48, 52, 56
    sHEAD, sSPL, sT0, sT1, sOK, sC, sWID, sMASKHI = 60, 61, 62, 63, 64, 65, 66, 67
    sNEG = 68
    queue = []
    def issue(tag): queue.append(tag)
    def wait_for(tag):
        idx = max(i for i, t in enumerate(queue) if t == tag)
        n = len(queue) - 1 - idx
        assert n <= 63
        e(f"  s_waitcnt vmcnt({n})")
    kname = NAME + "_kernel"
    def header(kn):
        e(f".globl {kn}"); e(".p2align 8"); e(f".type {kn},@function"); e(f"{kn}:")
    def srd(r, slo, nbytes, addreg=None):
        if addreg is None:
            e(f"  s_mov_b32 s{r}, s{slo}"); e(f"  s_mov_b32 s{r+1}, s{slo+1}")
        else:
            e(f"  s_add_u32 s{r}, s{slo}, s{addreg}"); e(f"  s_addc_u32 s{r+1}, s{slo+1}, 0")
        e(f"  s_mov_b32 s{r+2}, {nbytes}"); e(f"  s_mov_b32 s{r+3}, 0x20000")
    def out_offsets():
        e(f"  v_and_b32 v{vT}, 63, v0")
        e(f"  v_lshrrev_b32 v{vT+1}, 3, v{vT}")
        e(f"  v_mul_u32_u24 v{vT+1}, 3, v{vT+1}")
        e(f"  v_and_b32 v{vT+2}, 7, v{vT}")
        e(f"  v_lshlrev_b32 v{vT+2}, 4, v{vT+2}")
        for i in range(3):
            e(f"  v_add_u32 v{vT+3}, {i}, v{vT+1}")
            e(f"  v_lshrrev_b32 v{vT+4}, 3, v{vT+3}")
            e(f"  v_lshlrev_b32 v{vT+4}, 7, v{vT+4}")
            e(f"  v_and_b32 v{vT+3}, 7, v{vT+3}")
            e(f"  v_lshlrev_b32 v{vT+3}, 1, v{vT+3}")
            e(f"  v_add3_u32 v{vOO+i}, v{vT+4}, v{vT+3}, v{vT+2}")
    def dots(dst, src):
        for i in range(12):
            c = "0" if i == 0 else f"v{dst}"
            e(f"  v_dot2_f32_bf16 v{dst}, v{src+i}, v{vQ+i}, {c}")
        e("  s_nop 2")
        e(f"  v_add_f32_dpp v{dst}, v{dst}, v{dst} quad_perm:[1,0,3,2] row_mask:0xf bank_mask:0xf")
        e("  s_nop 1")
        e(f"  v_add_f32_dpp v{dst}, v{dst}, v{dst} quad_perm:[2,3,0,1] row_mask:0xf bank_mask:0xf")
        e("  s_nop 1")
        e(f"  v_add_f32_dpp v{dst}, v{dst}, v{dst} row_half_mirror row_mask:0xf bank_mask:0xf")
    def allred(x, t, op):
        e("  s_nop 1")
        e(f"  {op}_dpp v{x}, v{x}, v{x} row_ror:8 row_mask:0xf bank_mask:0xf")
        e(f"  v_mov_b32 v{t}, v{x}")
        e("  s_nop 1")
        e(f"  v_permlane16_swap_b32 v{x}, v{t}")
        e("  s_nop 1")
        e(f"  {op} v{x}, v{x}, v{t}")
        e(f"  v_mov_b32 v{t}, v{x}")
        e("  s_nop 1")
        e(f"  v_permlane32_swap_b32 v{x}, v{t}")
        e("  s_nop 1")
        e(f"  {op} v{x}, v{x}, v{t}")
    def combine(parts, n, o):
        mx, sm, w = vT, vT + 1, vT + 2
        e(f"  v_max_f32 v{mx}, v{parts[0]+3}, v{parts[1]+3}")
        for p in parts[2:]:
            e(f"  v_max_f32 v{mx}, v{mx}, v{p+3}")
        for p in parts:
            e(f"  v_sub_f32 v{p+3}, v{p+3}, v{mx}")
        for p in parts:
            e(f"  v_exp_f32 v{p+3}, v{p+3}")
        e("  s_nop 0")
        e(f"  v_add_f32 v{sm}, v{parts[0]+3}, v{parts[1]+3}")
        for p in parts[2:]:
            e(f"  v_add_f32 v{sm}, v{sm}, v{p+3}")
        e(f"  v_rcp_f32 v{w}, v{sm}")
        e(f"  v_log_f32 v{sm}, v{sm}")
        for i in range(3):
            e(f"  v_mul_f32 v{vT+4+i}, v{parts[0]+i}, v{parts[0]+3}")
        for p in parts[1:]:
            for i in range(3):
                e(f"  v_fmac_f32 v{vT+4+i}, v{p+i}, v{p+3}")
        for i in range(3):
            e(f"  v_mul_f32 v{o+i}, v{vT+4+i}, v{w}")
        e(f"  v_add_f32 v{o+3}, v{sm}, v{mx}")
    def final_store(o):
        e(f"  v_cvt_pk_bf16_f32 v{o}, v{o}, v{o+1}")
        e(f"  v_cvt_pk_bf16_f32 v{o+2}, v{o+2}, v{o+2}")
        e(f"  buffer_store_short v{o}, v{vOO}, s[{rOUT}:{rOUT+3}], 0 offen")
        e(f"  buffer_store_short_d16_hi v{o}, v{vOO+1}, s[{rOUT}:{rOUT+3}], 0 offen")
        e(f"  buffer_store_short v{o+2}, v{vOO+2}, s[{rOUT}:{rOUT+3}], 0 offen")

    header(kname)
    e(f"  s_cmp_ge_u32 s2, {NWG}")
    e("  s_cbranch_scc1 L_end")
    e("  s_load_dwordx16 s[4:19], s[0:1], 0")
    e("  s_load_dwordx2 s[20:21], s[0:1], 64")
    def st(i):
        if stamp: e(f"  s_memrealtime s[{70+2*i}:{71+2*i}]")
    st(0)
    lg = int(math.log2(SPLITS))
    e(f"  s_lshr_b32 s{sHEAD}, s2, {lg}")
    e(f"  s_and_b32 s{sSPL}, s2, {SPLITS-1}")
    e(f"  s_mul_i32 s{sT0}, s2, {CHUNK}")
    e(f"  s_mul_i32 s{sT1}, s{sHEAD}, {ROW}")
    e(f"  v_lshrrev_b32 v{vW}, 6, v0")
    e(f"  v_and_b32 v{vC16}, 7, v0")
    e(f"  v_lshlrev_b32 v{vC16}, 4, v{vC16}")
    e(f"  v_bfe_u32 v{vOFF}, v0, 3, 3")
    e(f"  v_mul_u32_u24 v{vOFF}, {ROW}, v{vOFF}")
    e(f"  v_add_u32 v{vOFF}, v{vOFF}, v{vC16}")
    wstride = 3072 if inter else G * 3072
    gstride = NW * 3072 if inter else 3072
    e(f"  s_mov_b32 s{sC}, {wstride}")
    e(f"  v_mul_lo_u32 v{vT}, v{vW}, s{sC}")
    e(f"  v_add_u32 v{vOFF}, v{vOFF}, v{vT}")
    e(f"  v_readfirstlane_b32 s{sWID}, v{vW}")
    out_offsets()
    e(f"  s_mov_b32 s{sMASKHI}, 0xffff0000")
    e("  s_waitcnt lgkmcnt(0)")
    srd(rK, sK, CHUNK, sT0)
    srd(rQ, sQ, ROW, sT1)
    for j in range(3):
        e(f"  buffer_load_dwordx4 v[{vQ+4*j}:{vQ+4*j+3}], v{vC16}, s[{rQ}:{rQ+3}], 0 offen offset:{j*128}")
        issue('q')
    def item_issue(t):
        slot = vRING + 12 * (t % R)
        isK = t < G
        g = t if isK else t - G
        r = rK if isK else rV
        off = g * gstride
        if off == 0:
            so = "0"
        else:
            e(f"  s_mov_b32 s{sOK}, {off}"); so = f"s{sOK}"
        for j in range(3):
            e(f"  buffer_load_dwordx4 v[{slot+4*j}:{slot+4*j+3}], v{vOFF}, s[{r}:{r+3}], {so} offen offset:{j*128} {LF if isK else LFV}")
            issue(('it', t))
    npro = min(R, 2 * G)
    for t in range(min(npro, G)):
        item_issue(t)
    srd(rV, sV, CHUNK, sT0)
    for t in range(G, npro):
        item_issue(t)
    srd(rKT, sKT, ROW, sT1)
    srd(rVT, sVT, ROW, sT1)
    srd(rMK, sMK, 2)
    srd(rOUT, sOUT, ROW, sT1)
    e(f"  s_lshl_b32 s{sT0}, s{sHEAD}, {10+lg}")
    srd(rWS, sWS, SPLITS * 1024, sT0)
    def tree_issue():
        for j in range(3):
            e(f"  buffer_load_dwordx4 v[{vKT+4*j}:{vKT+4*j+3}], v{vC16}, s[{rKT}:{rKT+3}], 0 offen offset:{j*128}")
            issue('tree')
        for i in range(3):
            e(f"  buffer_load_ushort v{vVT+i}, v{vOO+i}, s[{rVT}:{rVT+3}], 0 offen")
            issue('tree')
        e(f"  buffer_load_ushort v{vMK}, off, s[{rMK}:{rMK+3}], 0")
        issue('tree')
    def tree_process():
        wait_for('tree')
        dots(vST, vKT)
        for i in range(3):
            e(f"  v_lshlrev_b32 v{vVT+i}, 16, v{vVT+i}")
        e(f"  v_lshlrev_b32 v{vMK}, 16, v{vMK}")
        e(f"  v_sub_f32 v{vMK}, 1.0, v{vMK}")
        e(f"  s_mov_b32 s{sNEG}, {f2h(-1.0e9 * math.log2(math.e))}")
        e(f"  v_mul_f32 v{vMK}, s{sNEG}, v{vMK}")
        e(f"  v_fma_f32 v{vMK}, v{vST}, s{sC}, v{vMK}")
    def softmax_mid():
        mx, t, l = vT, vT + 1, vT + 2
        e(f"  v_max_f32 v{mx}, v{vS}, v{vS+1}")
        for i in range(2, G, 2):
            e(f"  v_max3_f32 v{mx}, v{mx}, v{vS+i}, v{vS+i+1}")
        allred(mx, t, "v_max_f32")
        e(f"  s_mov_b32 s{sC}, {f2h(c_log2)}")
        e(f"  v_mul_f32 v{mx}, s{sC}, v{mx}")
        for i in range(G):
            e(f"  v_fma_f32 v{vS+i}, v{vS+i}, s{sC}, -v{mx}")
        for i in range(G):
            e(f"  v_exp_f32 v{vS+i}, v{vS+i}")
        e("  s_nop 0")
        e(f"  v_add_f32 v{l}, v{vS}, v{vS+1}")
        for i in range(2, G):
            e(f"  v_add_f32 v{l}, v{l}, v{vS+i}")
        allred(l, t, "v_add_f32")
        e(f"  v_rcp_f32 v{t}, v{l}")
        e(f"  v_log_f32 v{l}, v{l}")
        e("  s_nop 0")
        for i in range(G):
            e(f"  v_mul_f32 v{vS+i}, v{vS+i}, v{t}")
        e(f"  v_add_f32 v{vLSE}, v{l}, v{mx}")
    tree_at_issue = G - 1
    tree_at_proc = min(2 * G - 1, tree_at_issue + R + 1)
    for t in range(2 * G):
        slot = vRING + 12 * (t % R)
        wait_for(('it', t))
        if t == 0: st(1)
        if t == G: st(2)
        if t < G:
            dots(vS + t, slot)
        else:
            g = t - G
            if g == 0:
                softmax_mid()
            p = vS + g
            pe = p - (p % 2)
            sel = "op_sel_hi:[1,0,1]" if p % 2 == 0 else "op_sel:[0,1,0] op_sel_hi:[1,1,1]"
            for i in range(12):
                tt = vT + 4 + 2 * (i % 4)
                e(f"  v_lshlrev_b32 v{tt}, 16, v{slot+i}")
                e(f"  v_and_b32 v{tt+1}, s{sMASKHI}, v{slot+i}")
                if g == 0:
                    e(f"  v_pk_mul_f32 v[{vACC+2*i}:{vACC+2*i+1}], v[{tt}:{tt+1}], v[{pe}:{pe+1}] " + sel.replace(",1]", "]").replace(",0]", "]") if False else
                      f"  v_pk_mul_f32 v[{vACC+2*i}:{vACC+2*i+1}], v[{tt}:{tt+1}], v[{pe}:{pe+1}] " + ("op_sel_hi:[1,0]" if p % 2 == 0 else "op_sel:[0,1] op_sel_hi:[1,1]"))
                else:
                    e(f"  v_pk_fma_f32 v[{vACC+2*i}:{vACC+2*i+1}], v[{tt}:{tt+1}], v[{pe}:{pe+1}], v[{vACC+2*i}:{vACC+2*i+1}] {sel}")
        if t + R < 2 * G:
            item_issue(t + R)
        if t == tree_at_issue:
            tree_issue()
        if t == tree_at_proc:
            tree_process()
    st(3)
    A = vACC
    e("  s_nop 1")
    for i in range(12):
        e(f"  v_permlane32_swap_b32 v{A+i}, v{A+i+12}")
    e("  s_nop 1")
    for i in range(12):
        e(f"  v_add_f32 v{A+i}, v{A+i}, v{A+i+12}")
    e("  s_nop 1")
    for i in range(6):
        e(f"  v_permlane16_swap_b32 v{A+i}, v{A+i+6}")
    e("  s_nop 1")
    for i in range(6):
        e(f"  v_add_f32 v{A+i}, v{A+i}, v{A+i+6}")
    Y = vKT
    e("  s_nop 1")
    for i in range(3):
        e(f"  v_add_f32_dpp v{Y+i}, v{A+i}, v{A+i} row_ror:8 row_mask:0xf bank_mask:0x3")
    for i in range(3):
        e(f"  v_add_f32_dpp v{Y+i}, v{A+i+3}, v{A+i+3} row_ror:8 row_mask:0xf bank_mask:0xc")
    e(f"  v_mov_b32 v{Y+3}, v{vLSE}")
    e(f"  v_lshlrev_b32 v{vT}, 4, v0")
    e(f"  ds_write_b128 v{vT}, v[{Y}:{Y+3}]")
    e("  s_waitcnt lgkmcnt(0)")
    e("  s_barrier")
    e(f"  s_cmp_lg_u32 s{sWID}, 0")
    e("  s_cbranch_scc1 L_end")
    st(4)
    P = vRING
    for w in range(NW):
        e(f"  ds_read_b128 v[{P+4*w}:{P+4*w+3}], v{vT} offset:{w*1024}")
    e("  s_waitcnt lgkmcnt(0)")
    combine([P + 4 * w for w in range(NW)], NW, Y)
    e(f"  s_lshl_b32 s{sOK}, s{sSPL}, 10")
    e(f"  v_lshlrev_b32 v{vT+8}, 4, v0")
    if two:
        e(f"  buffer_store_dwordx4 v[{Y}:{Y+3}], v{vT+8}, s[{rWS}:{rWS+3}], s{sOK} offen")
        e(f"  s_cmp_lg_u32 s{sSPL}, 0")
        e("  s_cbranch_scc1 L_end")
        e(f"  s_lshl_b32 s{sT0}, s{sHEAD}, 10")
        e(f"  s_add_u32 s{sT0}, s{sT0}, {NWG*1024}")
        srd(rDBG, sWS, 1024, sT0)
        for i in range(4):
            e(f"  v_mov_b32 v{P+i}, v{vVT+i}")
        e(f"  buffer_store_dwordx4 v[{P}:{P+3}], v{vT+8}, s[{rDBG}:{rDBG+3}], 0 offen")
        e("L_end:")
        e("  s_endpgm")
    else:
        e(f"  buffer_store_dwordx4 v[{Y}:{Y+3}], v{vT+8}, s[{rWS}:{rWS+3}], s{sOK} offen {PF}")
        srd(rDBG, sDBG, 256)
        e(f"  s_lshl_b32 s{sT0}, s{sHEAD}, 2")
        e(f"  v_mov_b32 v{vT+9}, s{sT0}")
        e(f"  v_mov_b32 v{vT+10}, 1")
        e("  s_waitcnt vmcnt(0)")
        st(5)
        e("  s_mov_b64 exec, 1")
        e(f"  buffer_atomic_add v{vT+10}, v{vT+9}, s[{rDBG}:{rDBG+3}], 0 offen sc0")
        e("  s_waitcnt vmcnt(0)")
        e(f"  v_readfirstlane_b32 s{sT0}, v{vT+10}")
        e("  s_mov_b64 exec, -1")
        st(6)
        e(f"  s_cmp_lg_u32 s{sT0}, {SPLITS-1}")
        e("  s_cbranch_scc1 L_fin")
        for s in range(SPLITS):
            e(f"  buffer_load_dwordx4 v[{P+4*s}:{P+4*s+3}], v{vT+8}, s[{rWS}:{rWS+3}], 0 offen offset:{(s%4)*1024} {PF}" if s < 4 else
              f"  buffer_load_dwordx4 v[{P+4*s}:{P+4*s+3}], v{vT+8}, s[{rWS}:{rWS+3}], s{sOK} offen offset:{(s%4)*1024} {PF}")
            if s % 4 == 3 and s + 1 < SPLITS:
                e(f"  s_mov_b32 s{sOK}, {(s+1)*1024}")
        PT = P + 4 * SPLITS
        for i in range(4):
            e(f"  v_mov_b32 v{PT+i}, v{vVT+i}")
        e("  s_waitcnt vmcnt(0)")
        combine([P + 4 * s for s in range(SPLITS + 1)], SPLITS + 1, Y)
        final_store(Y)
        e("L_fin:")
        if stamp:
            e("  s_waitcnt vmcnt(0)")
            st(7)
            e(f"  s_lshl_b32 s{sT0}, s2, 6")
            e(f"  s_add_u32 s{sT0}, s{sT0}, 0x100000")
            srd(rDBG, sWS, 64, sT0)
            e("  s_getreg_b32 s69, hwreg(HW_REG_XCC_ID)")
            e("  s_waitcnt lgkmcnt(0)")
            for i in range(8):
                e(f"  v_mov_b32 v{P+i}, s{70+2*i}")
            e(f"  v_mov_b32 v{P+8}, s69")
            e("  s_getreg_b32 s69, hwreg(HW_REG_HW_ID)")
            e(f"  v_mov_b32 v{P+9}, s69")
            e("  s_mov_b64 exec, 1")
            e(f"  buffer_store_dwordx4 v[{P}:{P+3}], off, s[{rDBG}:{rDBG+3}], 0")
            e(f"  buffer_store_dwordx4 v[{P+4}:{P+7}], off, s[{rDBG}:{rDBG+3}], 0 offset:16")
            e(f"  buffer_store_dwordx4 v[{P+8}:{P+11}], off, s[{rDBG}:{rDBG+3}], 0 offset:32")
        e("L_end:")
        e("  s_endpgm")
    kernels = [(kname, nv)]
    if two:
        k2 = NAME + "_comb_kernel"
        header(k2)
        e(f"  s_cmp_ge_u32 s2, {H}")
        e("  s_cbranch_scc1 L_end2")
        e("  s_load_dwordx2 s[16:17], s[0:1], 48")
        e("  s_load_dwordx2 s[20:21], s[0:1], 64")
        e(f"  s_mul_i32 s{sT1}, s2, {ROW}")
        e(f"  s_lshl_b32 s{sT0}, s2, {10+lg}")
        out_offsets()
        e(f"  v_lshlrev_b32 v{vT+8}, 4, v0")
        e("  s_waitcnt lgkmcnt(0)")
        srd(rWS, sWS, SPLITS * 1024, sT0)
        P = vRING
        for s in range(SPLITS):
            if s % 4 == 0:
                e(f"  s_mov_b32 s{sOK}, {s*1024}")
            e(f"  buffer_load_dwordx4 v[{P+4*s}:{P+4*s+3}], v{vT+8}, s[{rWS}:{rWS+3}], s{sOK} offen offset:{(s%4)*1024}")
        e(f"  s_lshl_b32 s{sT0}, s2, 10")
        e(f"  s_add_u32 s{sT0}, s{sT0}, {NWG*1024}")
        srd(rDBG, sWS, 1024, sT0)
        PT = P + 4 * SPLITS
        e(f"  buffer_load_dwordx4 v[{PT}:{PT+3}], v{vT+8}, s[{rDBG}:{rDBG+3}], 0 offen")
        srd(rOUT, sOUT, ROW, sT1)
        e("  s_waitcnt vmcnt(0)")
        combine([P + 4 * s for s in range(SPLITS + 1)], SPLITS + 1, Y)
        final_store(Y)
        e("L_end2:")
        e("  s_endpgm")
        kernels.append((k2, nv))
    lds = max(NW * 1024, lds_pad)
    hdr = open("cdna_kernels/" + NAME + ".s.ref").read().split("; Override launch")[0]
    out = [hdr.rstrip("\n")]
    if two:
        out.append(f"; @launch kernel={kname} grid=({NWG},1,1) block=({NW*64},1,1) lds={lds}")
        out.append(f"; @launch kernel={kernels[1][0]} grid=({H},1,1) block=(64,1,1) lds=0")
    else:
        out.append(f"; @launch grid=({NWG},1,1) block=({NW*64},1,1) lds={lds}")
    out.append('.amdgcn_target "amdgcn-amd-amdhsa--gfx950"')
    out.append(".text")
    out += L
    out.append('.section .rodata,"a"')
    for kn, n in kernels:
        n = vgpr_cap or n
        out.append(".p2align 6")
        out.append(f".amdhsa_kernel {kn}")
        out.append(f"  .amdhsa_next_free_vgpr {n}")
        out.append(f"  .amdhsa_next_free_sgpr 96")
        out.append(f"  .amdhsa_accum_offset {(n+3)//4*4}")
        out.append("  .amdhsa_group_segment_fixed_size 0")
        out.append("  .amdhsa_kernarg_size 72")
        out.append("  .amdhsa_user_sgpr_count 2")
        out.append("  .amdhsa_user_sgpr_kernarg_segment_ptr 1")
        out.append("  .amdhsa_system_sgpr_workgroup_id_x 1")
        out.append(".end_amdhsa_kernel")
    return "\n".join(out) + "\n"

import struct
def f2h(x):
    return "0x%08x" % struct.unpack("<I", struct.pack("<f", x))[0]

if __name__ == "__main__":
    import ast
    outp = sys.argv[1]
    kw = {}
    for a in sys.argv[2:]:
        k, v = a.split("=", 1)
        try: v = ast.literal_eval(v)
        except Exception: pass
        kw[k] = v
    open(outp, "w").write(gen(**kw))
```

```python
import sys, math
NAME = "standalone__tree_speculative_verify_tree_attention_over_candidate_token_tree__decode"

def gen(NW=4, SPLITS=8, R=12, LF="nt", LFV=None, inter=True, two=False, lds_pad=0, stamp=False, PF="sc1", vgpr_cap=None, kfirst=True):
    if LFV is None: LFV = LF
    H, C, D = 32, 8192, 192
    ROW = D * 2
    HEADB = C * ROW
    KEYS_WG = C // SPLITS
    CHUNK = KEYS_WG * ROW
    G = KEYS_WG // NW // 8
    NWG = H * SPLITS
    c_log2 = (D ** -0.5) * math.log2(math.e)
    L = []
    e = L.append
    vQ = 4
    vS = vQ + 12
    vACC = vS + G
    assert vACC % 2 == 0
    vKT = (vACC + 24 + 3) // 4 * 4
    vVT = vKT + 12
    vMK = vVT + 3
    vOO = vMK + 1
    vT = vOO + 3
    vT += vT % 2
    vLSE = vT + 12
    vST = vLSE + 1
    vRING = (vST + 1 + 3) // 4 * 4
    nv = vRING + 12 * R
    assert nv <= 256, nv
    vOFF = 1; vC16 = 2; vW = 3
    sQ, sK, sV, sKT, sVT, sMK, sOUT, sDBG, sWS = 4, 6, 8, 10, 12, 14, 16, 18, 20
    rK, rV, rQ, rKT, rVT, rMK, rOUT, rWS, rDBG = 24, 28, 32, 36, 40, 44, 48, 52, 56
    sHEAD, sSPL, sT0, sT1, sOK, sC, sWID, sMASKHI = 60, 61, 62, 63, 64, 65, 66, 67
    sNEG = 68
    queue = []
    def issue(tag): queue.append(tag)
    def wait_for(tag):
        idx = max(i for i, t in enumerate(queue) if t == tag)
        n = len(queue) - 1 - idx
        assert n <= 63
        e(f"  s_waitcnt vmcnt({n})")
    kname = NAME + "_kernel"
    def header(kn):
        e(f".globl {kn}"); e(".p2align 8"); e(f".type {kn},@function"); e(f"{kn}:")
    def srd(r, slo, nbytes, addreg=None):
        if addreg is None:
            e(f"  s_mov_b32 s{r}, s{slo}"); e(f"  s_mov_b32 s{r+1}, s{slo+1}")
        else:
            e(f"  s_add_u32 s{r}, s{slo}, s{addreg}"); e(f"  s_addc_u32 s{r+1}, s{slo+1}, 0")
        e(f"  s_mov_b32 s{r+2}, {nbytes}"); e(f"  s_mov_b32 s{r+3}, 0x20000")
    def out_offsets():
        e(f"  v_and_b32 v{vT}, 63, v0")
        e(f"  v_lshrrev_b32 v{vT+1}, 3, v{vT}")
        e(f"  v_mul_u32_u24 v{vT+1}, 3, v{vT+1}")
        e(f"  v_and_b32 v{vT+2}, 7, v{vT}")
        e(f"  v_lshlrev_b32 v{vT+2}, 4, v{vT+2}")
        for i in range(3):
            e(f"  v_add_u32 v{vT+3}, {i}, v{vT+1}")
            e(f"  v_lshrrev_b32 v{vT+4}, 3, v{vT+3}")
            e(f"  v_lshlrev_b32 v{vT+4}, 7, v{vT+4}")
            e(f"  v_and_b32 v{vT+3}, 7, v{vT+3}")
            e(f"  v_lshlrev_b32 v{vT+3}, 1, v{vT+3}")
            e(f"  v_add3_u32 v{vOO+i}, v{vT+4}, v{vT+3}, v{vT+2}")
    def dots(dst, src):
        for i in range(12):
            c = "0" if i == 0 else f"v{dst}"
            e(f"  v_dot2_f32_bf16 v{dst}, v{src+i}, v{vQ+i}, {c}")
        e("  s_nop 2")
        e(f"  v_add_f32_dpp v{dst}, v{dst}, v{dst} quad_perm:[1,0,3,2] row_mask:0xf bank_mask:0xf")
        e("  s_nop 1")
        e(f"  v_add_f32_dpp v{dst}, v{dst}, v{dst} quad_perm:[2,3,0,1] row_mask:0xf bank_mask:0xf")
        e("  s_nop 1")
        e(f"  v_add_f32_dpp v{dst}, v{dst}, v{dst} row_half_mirror row_mask:0xf bank_mask:0xf")
    def allred(x, t, op):
        e("  s_nop 1")
        e(f"  {op}_dpp v{x}, v{x}, v{x} row_ror:8 row_mask:0xf bank_mask:0xf")
        e(f"  v_mov_b32 v{t}, v{x}")
        e("  s_nop 1")
        e(f"  v_permlane16_swap_b32 v{x}, v{t}")
        e("  s_nop 1")
        e(f"  {op} v{x}, v{x}, v{t}")
        e(f"  v_mov_b32 v{t}, v{x}")
        e("  s_nop 1")
        e(f"  v_permlane32_swap_b32 v{x}, v{t}")
        e("  s_nop 1")
        e(f"  {op} v{x}, v{x}, v{t}")
    def combine(parts, n, o):
        mx, sm, w = vT, vT + 1, vT + 2
        e(f"  v_max_f32 v{mx}, v{parts[0]+3}, v{parts[1]+3}")
        for p in parts[2:]:
            e(f"  v_max_f32 v{mx}, v{mx}, v{p+3}")
        for p in parts:
            e(f"  v_sub_f32 v{p+3}, v{p+3}, v{mx}")
        for p in parts:
            e(f"  v_exp_f32 v{p+3}, v{p+3}")
        e("  s_nop 0")
        e(f"  v_add_f32 v{sm}, v{parts[0]+3}, v{parts[1]+3}")
        for p in parts[2:]:
            e(f"  v_add_f32 v{sm}, v{sm}, v{p+3}")
        e(f"  v_rcp_f32 v{w}, v{sm}")
        e(f"  v_log_f32 v{sm}, v{sm}")
        for i in range(3):
            e(f"  v_mul_f32 v{vT+4+i}, v{parts[0]+i}, v{parts[0]+3}")
        for p in parts[1:]:
            for i in range(3):
                e(f"  v_fmac_f32 v{vT+4+i}, v{p+i}, v{p+3}")
        for i in range(3):
            e(f"  v_mul_f32 v{o+i}, v{vT+4+i}, v{w}")
        e(f"  v_add_f32 v{o+3}, v{sm}, v{mx}")
    def final_store(o):
        e(f"  v_cvt_pk_bf16_f32 v{o}, v{o}, v{o+1}")
        e(f"  v_cvt_pk_bf16_f32 v{o+2}, v{o+2}, v{o+2}")
        e(f"  buffer_store_short v{o}, v{vOO}, s[{rOUT}:{rOUT+3}], 0 offen")
        e(f"  buffer_store_short_d16_hi v{o}, v{vOO+1}, s[{rOUT}:{rOUT+3}], 0 offen")
        e(f"  buffer_store_short v{o+2}, v{vOO+2}, s[{rOUT}:{rOUT+3}], 0 offen")

    header(kname)
    e(f"  s_cmp_ge_u32 s2, {NWG}")
    e("  s_cbranch_scc1 L_end")
    e("  s_load_dwordx16 s[4:19], s[0:1], 0")
    e("  s_load_dwordx2 s[20:21], s[0:1], 64")
    def st(i):
        if stamp: e(f"  s_memrealtime s[{70+2*i}:{71+2*i}]")
    st(0)
    lg = int(math.log2(SPLITS))
    e(f"  s_lshr_b32 s{sHEAD}, s2, {lg}")
    e(f"  s_and_b32 s{sSPL}, s2, {SPLITS-1}")
    e(f"  s_mul_i32 s{sT0}, s2, {CHUNK}")
    e(f"  s_mul_i32 s{sT1}, s{sHEAD}, {ROW}")
    e(f"  v_lshrrev_b32 v{vW}, 6, v0")
    e(f"  v_and_b32 v{vC16}, 7, v0")
    e(f"  v_lshlrev_b32 v{vC16}, 4, v{vC16}")
    e(f"  v_bfe_u32 v{vOFF}, v0, 3, 3")
    e(f"  v_mul_u32_u24 v{vOFF}, {ROW}, v{vOFF}")
    e(f"  v_add_u32 v{vOFF}, v{vOFF}, v{vC16}")
    wstride = 3072 if inter else G * 3072
    gstride = NW * 3072 if inter else 3072
    e(f"  s_mov_b32 s{sC}, {wstride}")
    e(f"  v_mul_lo_u32 v{vT}, v{vW}, s{sC}")
    e(f"  v_add_u32 v{vOFF}, v{vOFF}, v{vT}")
    e(f"  v_readfirstlane_b32 s{sWID}, v{vW}")
    out_offsets()
    e(f"  s_mov_b32 s{sMASKHI}, 0xffff0000")
    e("  s_waitcnt lgkmcnt(0)")
    srd(rK, sK, CHUNK, sT0)
    srd(rQ, sQ, ROW, sT1)
    for j in range(3):
        e(f"  buffer_load_dwordx4 v[{vQ+4*j}:{vQ+4*j+3}], v{vC16}, s[{rQ}:{rQ+3}], 0 offen offset:{j*128}")
        issue('q')
    def item_issue(t):
        slot = vRING + 12 * (t % R)
        isK = t < G
        g = t if isK else t - G
        r = rK if isK else rV
        off = g * gstride
        if off == 0:
            so = "0"
        else:
            e(f"  s_mov_b32 s{sOK}, {off}"); so = f"s{sOK}"
        for j in range(3):
            e(f"  buffer_load_dwordx4 v[{slot+4*j}:{slot+4*j+3}], v{vOFF}, s[{r}:{r+3}], {so} offen offset:{j*128} {LF if isK else LFV}")
            issue(('it', t))
    npro = min(R, 2 * G)
    for t in range(min(npro, G)):
        item_issue(t)
    srd(rV, sV, CHUNK, sT0)
    for t in range(G, npro):
        item_issue(t)
    srd(rKT, sKT, ROW, sT1)
    srd(rVT, sVT, ROW, sT1)
    srd(rMK, sMK, 2)
    srd(rOUT, sOUT, ROW, sT1)
    e(f"  s_lshl_b32 s{sT0}, s{sHEAD}, {10+lg}")
    srd(rWS, sWS, SPLITS * 1024, sT0)
    def tree_issue():
        for j in range(3):
            e(f"  buffer_load_dwordx4 v[{vKT+4*j}:{vKT+4*j+3}], v{vC16}, s[{rKT}:{rKT+3}], 0 offen offset:{j*128}")
            issue('tree')
        for i in range(3):
            e(f"  buffer_load_ushort v{vVT+i}, v{vOO+i}, s[{rVT}:{rVT+3}], 0 offen")
            issue('tree')
        e(f"  buffer_load_ushort v{vMK}, off, s[{rMK}:{rMK+3}], 0")
        issue('tree')
    def tree_process():
        wait_for('tree')
        dots(vST, vKT)
        for i in range(3):
            e(f"  v_lshlrev_b32 v{vVT+i}, 16, v{vVT+i}")
        e(f"  v_lshlrev_b32 v{vMK}, 16, v{vMK}")
        e(f"  v_sub_f32 v{vMK}, 1.0, v{vMK}")
        e(f"  s_mov_b32 s{sNEG}, {f2h(-1.0e9 * math.log2(math.e))}")
        e(f"  v_mul_f32 v{vMK}, s{sNEG}, v{vMK}")
        e(f"  v_fma_f32 v{vMK}, v{vST}, s{sC}, v{vMK}")
    def softmax_mid():
        mx, t, l = vT, vT + 1, vT + 2
        e(f"  v_max_f32 v{mx}, v{vS}, v{vS+1}")
        for i in range(2, G, 2):
            e(f"  v_max3_f32 v{mx}, v{mx}, v{vS+i}, v{vS+i+1}")
        allred(mx, t, "v_max_f32")
        e(f"  s_mov_b32 s{sC}, {f2h(c_log2)}")
        e(f"  v_mul_f32 v{mx}, s{sC}, v{mx}")
        for i in range(G):
            e(f"  v_fma_f32 v{vS+i}, v{vS+i}, s{sC}, -v{mx}")
        for i in range(G):
            e(f"  v_exp_f32 v{vS+i}, v{vS+i}")
        e("  s_nop 0")
        e(f"  v_add_f32 v{l}, v{vS}, v{vS+1}")
        for i in range(2, G):
            e(f"  v_add_f32 v{l}, v{l}, v{vS+i}")
        allred(l, t, "v_add_f32")
        e(f"  v_rcp_f32 v{t}, v{l}")
        e(f"  v_log_f32 v{l}, v{l}")
        e("  s_nop 0")
        for i in range(G):
            e(f"  v_mul_f32 v{vS+i}, v{vS+i}, v{t}")
        e(f"  v_add_f32 v{vLSE}, v{l}, v{mx}")
    tree_at_issue = G - 1
    tree_at_proc = min(2 * G - 1, tree_at_issue + R + 1)
    for t in range(2 * G):
        slot = vRING + 12 * (t % R)
        wait_for(('it', t))
        if t == 0: st(1)
        if t == G: st(2)
        if t < G:
            dots(vS + t, slot)
        else:
            g = t - G
            if g == 0:
                softmax_mid()
            p = vS + g
            pe = p - (p % 2)
            sel = "op_sel_hi:[1,0,1]" if p % 2 == 0 else "op_sel:[0,1,0] op_sel_hi:[1,1,1]"
            for i in range(12):
                tt = vT + 4 + 2 * (i % 4)
                e(f"  v_lshlrev_b32 v{tt}, 16, v{slot+i}")
                e(f"  v_and_b32 v{tt+1}, s{sMASKHI}, v{slot+i}")
                if g == 0:
                    e(f"  v_pk_mul_f32 v[{vACC+2*i}:{vACC+2*i+1}], v[{tt}:{tt+1}], v[{pe}:{pe+1}] " + sel.replace(",1]", "]").replace(",0]", "]") if False else
                      f"  v_pk_mul_f32 v[{vACC+2*i}:{vACC+2*i+1}], v[{tt}:{tt+1}], v[{pe}:{pe+1}] " + ("op_sel_hi:[1,0]" if p % 2 == 0 else "op_sel:[0,1] op_sel_hi:[1,1]"))
                else:
                    e(f"  v_pk_fma_f32 v[{vACC+2*i}:{vACC+2*i+1}], v[{tt}:{tt+1}], v[{pe}:{pe+1}], v[{vACC+2*i}:{vACC+2*i+1}] {sel}")
        if t + R < 2 * G:
            item_issue(t + R)
        if t == tree_at_issue:
            tree_issue()
        if t == tree_at_proc:
            tree_process()
    st(3)
    A = vACC
    e("  s_nop 1")
    for i in range(12):
        e(f"  v_permlane32_swap_b32 v{A+i}, v{A+i+12}")
    e("  s_nop 1")
    for i in range(12):
        e(f"  v_add_f32 v{A+i}, v{A+i}, v{A+i+12}")
    e("  s_nop 1")
    for i in range(6):
        e(f"  v_permlane16_swap_b32 v{A+i}, v{A+i+6}")
    e("  s_nop 1")
    for i in range(6):
        e(f"  v_add_f32 v{A+i}, v{A+i}, v{A+i+6}")
    Y = vKT
    e("  s_nop 1")
    for i in range(3):
        e(f"  v_add_f32_dpp v{Y+i}, v{A+i}, v{A+i} row_ror:8 row_mask:0xf bank_mask:0x3")
    for i in range(3):
        e(f"  v_add_f32_dpp v{Y+i}, v{A+i+3}, v{A+i+3} row_ror:8 row_mask:0xf bank_mask:0xc")
    e(f"  v_mov_b32 v{Y+3}, v{vLSE}")
    e(f"  v_lshlrev_b32 v{vT}, 4, v0")
    e(f"  ds_write_b128 v{vT}, v[{Y}:{Y+3}]")
    e("  s_waitcnt lgkmcnt(0)")
    e("  s_barrier")
    e(f"  s_cmp_lg_u32 s{sWID}, 0")
    e("  s_cbranch_scc1 L_end")
    st(4)
    P = vRING
    for w in range(NW):
        e(f"  ds_read_b128 v[{P+4*w}:{P+4*w+3}], v{vT} offset:{w*1024}")
    e("  s_waitcnt lgkmcnt(0)")
    combine([P + 4 * w for w in range(NW)], NW, Y)
    e(f"  s_lshl_b32 s{sOK}, s{sSPL}, 10")
    e(f"  v_lshlrev_b32 v{vT+8}, 4, v0")
    if two:
        e(f"  buffer_store_dwordx4 v[{Y}:{Y+3}], v{vT+8}, s[{rWS}:{rWS+3}], s{sOK} offen")
        e(f"  s_cmp_lg_u32 s{sSPL}, 0")
        e("  s_cbranch_scc1 L_end")
        e(f"  s_lshl_b32 s{sT0}, s{sHEAD}, 10")
        e(f"  s_add_u32 s{sT0}, s{sT0}, {NWG*1024}")
        srd(rDBG, sWS, 1024, sT0)
        for i in range(4):
            e(f"  v_mov_b32 v{P+i}, v{vVT+i}")
        e(f"  buffer_store_dwordx4 v[{P}:{P+3}], v{vT+8}, s[{rDBG}:{rDBG+3}], 0 offen")
        e("L_end:")
        e("  s_endpgm")
    else:
        e(f"  buffer_store_dwordx4 v[{Y}:{Y+3}], v{vT+8}, s[{rWS}:{rWS+3}], s{sOK} offen {PF}")
        srd(rDBG, sDBG, 256)
        e(f"  s_lshl_b32 s{sT0}, s{sHEAD}, 2")
        e(f"  s_add_u32 s{sT0}, s{sT0}, 128")
        e(f"  v_mov_b32 v{vT+9}, s{sT0}")
        e(f"  v_mov_b32 v{vT+10}, 1")
        e("  s_waitcnt vmcnt(0)")
        st(5)
        e("  s_mov_b64 exec, 1")
        e(f"  buffer_atomic_add v{vT+10}, v{vT+9}, s[{rDBG}:{rDBG+3}], 0 offen sc0")
        e("  s_waitcnt vmcnt(0)")
        e(f"  v_readfirstlane_b32 s{sT0}, v{vT+10}")
        e("  s_mov_b64 exec, -1")
        st(6)
        e(f"  s_cmp_lg_u32 s{sT0}, {SPLITS-1}")
        e("  s_cbranch_scc1 L_fin")
        for s in range(SPLITS):
            e(f"  buffer_load_dwordx4 v[{P+4*s}:{P+4*s+3}], v{vT+8}, s[{rWS}:{rWS+3}], 0 offen offset:{(s%4)*1024} {PF}" if s < 4 else
              f"  buffer_load_dwordx4 v[{P+4*s}:{P+4*s+3}], v{vT+8}, s[{rWS}:{rWS+3}], s{sOK} offen offset:{(s%4)*1024} {PF}")
            if s % 4 == 3 and s + 1 < SPLITS:
                e(f"  s_mov_b32 s{sOK}, {(s+1)*1024}")
        PT = P + 4 * SPLITS
        for i in range(4):
            e(f"  v_mov_b32 v{PT+i}, v{vVT+i}")
        e("  s_waitcnt vmcnt(0)")
        combine([P + 4 * s for s in range(SPLITS + 1)], SPLITS + 1, Y)
        final_store(Y)
        e("L_fin:")
        if stamp == 2:
            e("  s_waitcnt vmcnt(0)")
            st(7)
            srd(rDBG, sDBG, 256)
            e("  s_waitcnt lgkmcnt(0)")
            e("  s_mov_b64 exec, 1")
            idx = 0
            for i in (0, 1, 2, 3, 7):
                for neg in (True, False):
                    e(f"  v_mov_b32 v{P}, s{70+2*i}")
                    if neg: e(f"  v_not_b32 v{P}, v{P}")
                    e(f"  buffer_atomic_umax v{P}, off, s[{rDBG}:{rDBG+3}], 0 offset:{idx*4}")
                    e("  s_waitcnt vmcnt(0)")
                    idx += 1
        elif stamp:
            e("  s_waitcnt vmcnt(0)")
            st(7)
            e(f"  s_lshl_b32 s{sT0}, s2, 6")
            e(f"  s_add_u32 s{sT0}, s{sT0}, 0x100000")
            srd(rDBG, sWS, 64, sT0)
            e("  s_getreg_b32 s69, hwreg(HW_REG_XCC_ID)")
            e("  s_waitcnt lgkmcnt(0)")
            for i in range(8):
                e(f"  v_mov_b32 v{P+i}, s{70+2*i}")
            e(f"  v_mov_b32 v{P+8}, s69")
            e("  s_getreg_b32 s69, hwreg(HW_REG_HW_ID)")
            e(f"  v_mov_b32 v{P+9}, s69")
            e("  s_mov_b64 exec, 1")
            e(f"  buffer_store_dwordx4 v[{P}:{P+3}], off, s[{rDBG}:{rDBG+3}], 0")
            e(f"  buffer_store_dwordx4 v[{P+4}:{P+7}], off, s[{rDBG}:{rDBG+3}], 0 offset:16")
            e(f"  buffer_store_dwordx4 v[{P+8}:{P+11}], off, s[{rDBG}:{rDBG+3}], 0 offset:32")
        e("L_end:")
        e("  s_endpgm")
    kernels = [(kname, nv)]
    if two:
        k2 = NAME + "_comb_kernel"
        header(k2)
        e(f"  s_cmp_ge_u32 s2, {H}")
        e("  s_cbranch_scc1 L_end2")
        e("  s_load_dwordx2 s[16:17], s[0:1], 48")
        e("  s_load_dwordx2 s[20:21], s[0:1], 64")
        e(f"  s_mul_i32 s{sT1}, s2, {ROW}")
        e(f"  s_lshl_b32 s{sT0}, s2, {10+lg}")
        out_offsets()
        e(f"  v_lshlrev_b32 v{vT+8}, 4, v0")
        e("  s_waitcnt lgkmcnt(0)")
        srd(rWS, sWS, SPLITS * 1024, sT0)
        P = vRING
        for s in range(SPLITS):
            if s % 4 == 0:
                e(f"  s_mov_b32 s{sOK}, {s*1024}")
            e(f"  buffer_load_dwordx4 v[{P+4*s}:{P+4*s+3}], v{vT+8}, s[{rWS}:{rWS+3}], s{sOK} offen offset:{(s%4)*1024}")
        e(f"  s_lshl_b32 s{sT0}, s2, 10")
        e(f"  s_add_u32 s{sT0}, s{sT0}, {NWG*1024}")
        srd(rDBG, sWS, 1024, sT0)
        PT = P + 4 * SPLITS
        e(f"  buffer_load_dwordx4 v[{PT}:{PT+3}], v{vT+8}, s[{rDBG}:{rDBG+3}], 0 offen")
        srd(rOUT, sOUT, ROW, sT1)
        e("  s_waitcnt vmcnt(0)")
        combine([P + 4 * s for s in range(SPLITS + 1)], SPLITS + 1, Y)
        final_store(Y)
        e("L_end2:")
        e("  s_endpgm")
        kernels.append((k2, nv))
    lds = max(NW * 1024, lds_pad)
    hdr = open("cdna_kernels/" + NAME + ".s.ref").read().split("; Override launch")[0]
    out = [hdr.rstrip("\n")]
    if two:
        out.append(f"; @launch kernel={kname} grid=({NWG},1,1) block=({NW*64},1,1) lds={lds}")
        out.append(f"; @launch kernel={kernels[1][0]} grid=({H},1,1) block=(64,1,1) lds=0")
    else:
        out.append(f"; @launch grid=({NWG},1,1) block=({NW*64},1,1) lds={lds}")
    out.append('.amdgcn_target "amdgcn-amd-amdhsa--gfx950"')
    out.append(".text")
    out += L
    out.append('.section .rodata,"a"')
    for kn, n in kernels:
        n = vgpr_cap or n
        out.append(".p2align 6")
        out.append(f".amdhsa_kernel {kn}")
        out.append(f"  .amdhsa_next_free_vgpr {n}")
        out.append(f"  .amdhsa_next_free_sgpr 96")
        out.append(f"  .amdhsa_accum_offset {(n+3)//4*4}")
        out.append("  .amdhsa_group_segment_fixed_size 0")
        out.append("  .amdhsa_kernarg_size 72")
        out.append("  .amdhsa_user_sgpr_count 2")
        out.append("  .amdhsa_user_sgpr_kernarg_segment_ptr 1")
        out.append("  .amdhsa_system_sgpr_workgroup_id_x 1")
        out.append(".end_amdhsa_kernel")
    return "\n".join(out) + "\n"

import struct
def f2h(x):
    return "0x%08x" % struct.unpack("<I", struct.pack("<f", x))[0]

if __name__ == "__main__":
    import ast
    outp = sys.argv[1]
    kw = {}
    for a in sys.argv[2:]:
        k, v = a.split("=", 1)
        try: v = ast.literal_eval(v)
        except Exception: pass
        kw[k] = v
    open(outp, "w").write(gen(**kw))
```

```python
import sys, math
NAME = "standalone__tree_speculative_verify_tree_attention_over_candidate_token_tree__decode"

def gen(NW=4, SPLITS=8, R=12, LF="nt", LFV=None, inter=True, two=False, lds_pad=0, stamp=False, PF="sc1", vgpr_cap=None, kfirst=True, extra=0):
    if LFV is None: LFV = LF
    H, C, D = 32, 8192, 192
    ROW = D * 2
    HEADB = C * ROW
    KEYS_WG = C // SPLITS
    CHUNK = KEYS_WG * ROW
    G = KEYS_WG // NW // 8
    NWG = H * SPLITS
    c_log2 = (D ** -0.5) * math.log2(math.e)
    L = []
    e = L.append
    vQ = 4
    vS = vQ + 12
    vACC = vS + G
    assert vACC % 2 == 0
    vKT = (vACC + 24 + 3) // 4 * 4
    vVT = vKT + 12
    vMK = vVT + 3
    vOO = vMK + 1
    vT = vOO + 3
    vT += vT % 2
    vLSE = vT + 12
    vST = vLSE + 1
    vRING = (vST + 1 + 3) // 4 * 4
    nv = vRING + 12 * R
    assert nv <= 256, nv
    vOFF = 1; vC16 = 2; vW = 3
    sQ, sK, sV, sKT, sVT, sMK, sOUT, sDBG, sWS = 4, 6, 8, 10, 12, 14, 16, 18, 20
    rK, rV, rQ, rKT, rVT, rMK, rOUT, rWS, rDBG = 24, 28, 32, 36, 40, 44, 48, 52, 56
    sHEAD, sSPL, sT0, sT1, sOK, sC, sWID, sMASKHI = 60, 61, 62, 63, 64, 65, 66, 67
    sNEG = 68
    queue = []
    def issue(tag): queue.append(tag)
    def wait_for(tag):
        idx = max(i for i, t in enumerate(queue) if t == tag)
        n = len(queue) - 1 - idx
        assert n <= 63
        e(f"  s_waitcnt vmcnt({n})")
    kname = NAME + "_kernel"
    def header(kn):
        e(f".globl {kn}"); e(".p2align 8"); e(f".type {kn},@function"); e(f"{kn}:")
    def srd(r, slo, nbytes, addreg=None):
        if addreg is None:
            e(f"  s_mov_b32 s{r}, s{slo}"); e(f"  s_mov_b32 s{r+1}, s{slo+1}")
        else:
            e(f"  s_add_u32 s{r}, s{slo}, s{addreg}"); e(f"  s_addc_u32 s{r+1}, s{slo+1}, 0")
        e(f"  s_mov_b32 s{r+2}, {nbytes}"); e(f"  s_mov_b32 s{r+3}, 0x20000")
    def out_offsets():
        e(f"  v_and_b32 v{vT}, 63, v0")
        e(f"  v_lshrrev_b32 v{vT+1}, 3, v{vT}")
        e(f"  v_mul_u32_u24 v{vT+1}, 3, v{vT+1}")
        e(f"  v_and_b32 v{vT+2}, 7, v{vT}")
        e(f"  v_lshlrev_b32 v{vT+2}, 4, v{vT+2}")
        for i in range(3):
            e(f"  v_add_u32 v{vT+3}, {i}, v{vT+1}")
            e(f"  v_lshrrev_b32 v{vT+4}, 3, v{vT+3}")
            e(f"  v_lshlrev_b32 v{vT+4}, 7, v{vT+4}")
            e(f"  v_and_b32 v{vT+3}, 7, v{vT+3}")
            e(f"  v_lshlrev_b32 v{vT+3}, 1, v{vT+3}")
            e(f"  v_add3_u32 v{vOO+i}, v{vT+4}, v{vT+3}, v{vT+2}")
    def dots(dst, src):
        for i in range(12):
            c = "0" if i == 0 else f"v{dst}"
            e(f"  v_dot2_f32_bf16 v{dst}, v{src+i}, v{vQ+i}, {c}")
        e("  s_nop 2")
        e(f"  v_add_f32_dpp v{dst}, v{dst}, v{dst} quad_perm:[1,0,3,2] row_mask:0xf bank_mask:0xf")
        e("  s_nop 1")
        e(f"  v_add_f32_dpp v{dst}, v{dst}, v{dst} quad_perm:[2,3,0,1] row_mask:0xf bank_mask:0xf")
        e("  s_nop 1")
        e(f"  v_add_f32_dpp v{dst}, v{dst}, v{dst} row_half_mirror row_mask:0xf bank_mask:0xf")
    def allred(x, t, op):
        e("  s_nop 1")
        e(f"  {op}_dpp v{x}, v{x}, v{x} row_ror:8 row_mask:0xf bank_mask:0xf")
        e(f"  v_mov_b32 v{t}, v{x}")
        e("  s_nop 1")
        e(f"  v_permlane16_swap_b32 v{x}, v{t}")
        e("  s_nop 1")
        e(f"  {op} v{x}, v{x}, v{t}")
        e(f"  v_mov_b32 v{t}, v{x}")
        e("  s_nop 1")
        e(f"  v_permlane32_swap_b32 v{x}, v{t}")
        e("  s_nop 1")
        e(f"  {op} v{x}, v{x}, v{t}")
    def combine(parts, n, o):
        mx, sm, w = vT, vT + 1, vT + 2
        e(f"  v_max_f32 v{mx}, v{parts[0]+3}, v{parts[1]+3}")
        for p in parts[2:]:
            e(f"  v_max_f32 v{mx}, v{mx}, v{p+3}")
        for p in parts:
            e(f"  v_sub_f32 v{p+3}, v{p+3}, v{mx}")
        for p in parts:
            e(f"  v_exp_f32 v{p+3}, v{p+3}")
        e("  s_nop 0")
        e(f"  v_add_f32 v{sm}, v{parts[0]+3}, v{parts[1]+3}")
        for p in parts[2:]:
            e(f"  v_add_f32 v{sm}, v{sm}, v{p+3}")
        e(f"  v_rcp_f32 v{w}, v{sm}")
        e(f"  v_log_f32 v{sm}, v{sm}")
        for i in range(3):
            e(f"  v_mul_f32 v{vT+4+i}, v{parts[0]+i}, v{parts[0]+3}")
        for p in parts[1:]:
            for i in range(3):
                e(f"  v_fmac_f32 v{vT+4+i}, v{p+i}, v{p+3}")
        for i in range(3):
            e(f"  v_mul_f32 v{o+i}, v{vT+4+i}, v{w}")
        e(f"  v_add_f32 v{o+3}, v{sm}, v{mx}")
    def final_store(o):
        e(f"  v_cvt_pk_bf16_f32 v{o}, v{o}, v{o+1}")
        e(f"  v_cvt_pk_bf16_f32 v{o+2}, v{o+2}, v{o+2}")
        e(f"  buffer_store_short v{o}, v{vOO}, s[{rOUT}:{rOUT+3}], 0 offen")
        e(f"  buffer_store_short_d16_hi v{o}, v{vOO+1}, s[{rOUT}:{rOUT+3}], 0 offen")
        e(f"  buffer_store_short v{o+2}, v{vOO+2}, s[{rOUT}:{rOUT+3}], 0 offen")

    header(kname)
    e(f"  s_cmp_ge_u32 s2, {NWG}")
    e("  s_cbranch_scc1 L_end")
    e("  s_load_dwordx16 s[4:19], s[0:1], 0")
    e("  s_load_dwordx2 s[20:21], s[0:1], 64")
    def st(i):
        if stamp: e(f"  s_memrealtime s[{70+2*i}:{71+2*i}]")
    st(0)
    lg = int(math.log2(SPLITS))
    e(f"  s_lshr_b32 s{sHEAD}, s2, {lg}")
    e(f"  s_and_b32 s{sSPL}, s2, {SPLITS-1}")
    e(f"  s_mul_i32 s{sT0}, s2, {CHUNK}")
    e(f"  s_mul_i32 s{sT1}, s{sHEAD}, {ROW}")
    e(f"  v_lshrrev_b32 v{vW}, 6, v0")
    e(f"  v_and_b32 v{vC16}, 7, v0")
    e(f"  v_lshlrev_b32 v{vC16}, 4, v{vC16}")
    e(f"  v_bfe_u32 v{vOFF}, v0, 3, 3")
    e(f"  v_mul_u32_u24 v{vOFF}, {ROW}, v{vOFF}")
    e(f"  v_add_u32 v{vOFF}, v{vOFF}, v{vC16}")
    wstride = 3072 if inter else G * 3072
    gstride = NW * 3072 if inter else 3072
    e(f"  s_mov_b32 s{sC}, {wstride}")
    e(f"  v_mul_lo_u32 v{vT}, v{vW}, s{sC}")
    e(f"  v_add_u32 v{vOFF}, v{vOFF}, v{vT}")
    e(f"  v_readfirstlane_b32 s{sWID}, v{vW}")
    out_offsets()
    e(f"  s_mov_b32 s{sMASKHI}, 0xffff0000")
    e("  s_waitcnt lgkmcnt(0)")
    srd(rK, sK, CHUNK, sT0)
    srd(rQ, sQ, ROW, sT1)
    for j in range(3):
        e(f"  buffer_load_dwordx4 v[{vQ+4*j}:{vQ+4*j+3}], v{vC16}, s[{rQ}:{rQ+3}], 0 offen offset:{j*128}")
        issue('q')
    def item_issue(t):
        slot = vRING + 12 * (t % R)
        isK = t < G
        g = t if isK else t - G
        r = rK if isK else rV
        off = g * gstride
        if off == 0:
            so = "0"
        else:
            e(f"  s_mov_b32 s{sOK}, {off}"); so = f"s{sOK}"
        for j in range(3):
            e(f"  buffer_load_dwordx4 v[{slot+4*j}:{slot+4*j+3}], v{vOFF}, s[{r}:{r+3}], {so} offen offset:{j*128} {LF if isK else LFV}")
            issue(('it', t))
    for x in range(extra):
        slot = vRING + 12 * (x % R)
        g = x % G
        r = rK
        e(f"  s_mov_b32 s{sOK}, {g * gstride}")
        if x >= R:
            e(f"  s_waitcnt vmcnt({3*(R-1)})")
        for j in range(3):
            e(f"  buffer_load_dwordx4 v[{slot+4*j}:{slot+4*j+3}], v{vOFF}, s[{r}:{r+3}], s{sOK} offen offset:{j*128} {LF}")
    if extra: e("  s_waitcnt vmcnt(0)")
    npro = min(R, 2 * G)
    for t in range(min(npro, G)):
        item_issue(t)
    srd(rV, sV, CHUNK, sT0)
    for t in range(G, npro):
        item_issue(t)
    srd(rKT, sKT, ROW, sT1)
    srd(rVT, sVT, ROW, sT1)
    srd(rMK, sMK, 2)
    srd(rOUT, sOUT, ROW, sT1)
    e(f"  s_lshl_b32 s{sT0}, s{sHEAD}, {10+lg}")
    srd(rWS, sWS, SPLITS * 1024, sT0)
    def tree_issue():
        for j in range(3):
            e(f"  buffer_load_dwordx4 v[{vKT+4*j}:{vKT+4*j+3}], v{vC16}, s[{rKT}:{rKT+3}], 0 offen offset:{j*128}")
            issue('tree')
        for i in range(3):
            e(f"  buffer_load_ushort v{vVT+i}, v{vOO+i}, s[{rVT}:{rVT+3}], 0 offen")
            issue('tree')
        e(f"  buffer_load_ushort v{vMK}, off, s[{rMK}:{rMK+3}], 0")
        issue('tree')
    def tree_process():
        wait_for('tree')
        dots(vST, vKT)
        for i in range(3):
            e(f"  v_lshlrev_b32 v{vVT+i}, 16, v{vVT+i}")
        e(f"  v_lshlrev_b32 v{vMK}, 16, v{vMK}")
        e(f"  v_sub_f32 v{vMK}, 1.0, v{vMK}")
        e(f"  s_mov_b32 s{sNEG}, {f2h(-1.0e9 * math.log2(math.e))}")
        e(f"  v_mul_f32 v{vMK}, s{sNEG}, v{vMK}")
        e(f"  v_fma_f32 v{vMK}, v{vST}, s{sC}, v{vMK}")
    def softmax_mid():
        mx, t, l = vT, vT + 1, vT + 2
        e(f"  v_max_f32 v{mx}, v{vS}, v{vS+1}")
        for i in range(2, G, 2):
            e(f"  v_max3_f32 v{mx}, v{mx}, v{vS+i}, v{vS+i+1}")
        allred(mx, t, "v_max_f32")
        e(f"  s_mov_b32 s{sC}, {f2h(c_log2)}")
        e(f"  v_mul_f32 v{mx}, s{sC}, v{mx}")
        for i in range(G):
            e(f"  v_fma_f32 v{vS+i}, v{vS+i}, s{sC}, -v{mx}")
        for i in range(G):
            e(f"  v_exp_f32 v{vS+i}, v{vS+i}")
        e("  s_nop 0")
        e(f"  v_add_f32 v{l}, v{vS}, v{vS+1}")
        for i in range(2, G):
            e(f"  v_add_f32 v{l}, v{l}, v{vS+i}")
        allred(l, t, "v_add_f32")
        e(f"  v_rcp_f32 v{t}, v{l}")
        e(f"  v_log_f32 v{l}, v{l}")
        e("  s_nop 0")
        for i in range(G):
            e(f"  v_mul_f32 v{vS+i}, v{vS+i}, v{t}")
        e(f"  v_add_f32 v{vLSE}, v{l}, v{mx}")
    tree_at_issue = G - 1
    tree_at_proc = min(2 * G - 1, tree_at_issue + R + 1)
    for t in range(2 * G):
        slot = vRING + 12 * (t % R)
        wait_for(('it', t))
        if t == 0: st(1)
        if t == G: st(2)
        if t < G:
            dots(vS + t, slot)
        else:
            g = t - G
            if g == 0:
                softmax_mid()
            p = vS + g
            pe = p - (p % 2)
            sel = "op_sel_hi:[1,0,1]" if p % 2 == 0 else "op_sel:[0,1,0] op_sel_hi:[1,1,1]"
            for i in range(12):
                tt = vT + 4 + 2 * (i % 4)
                e(f"  v_lshlrev_b32 v{tt}, 16, v{slot+i}")
                e(f"  v_and_b32 v{tt+1}, s{sMASKHI}, v{slot+i}")
                if g == 0:
                    e(f"  v_pk_mul_f32 v[{vACC+2*i}:{vACC+2*i+1}], v[{tt}:{tt+1}], v[{pe}:{pe+1}] " + sel.replace(",1]", "]").replace(",0]", "]") if False else
                      f"  v_pk_mul_f32 v[{vACC+2*i}:{vACC+2*i+1}], v[{tt}:{tt+1}], v[{pe}:{pe+1}] " + ("op_sel_hi:[1,0]" if p % 2 == 0 else "op_sel:[0,1] op_sel_hi:[1,1]"))
                else:
                    e(f"  v_pk_fma_f32 v[{vACC+2*i}:{vACC+2*i+1}], v[{tt}:{tt+1}], v[{pe}:{pe+1}], v[{vACC+2*i}:{vACC+2*i+1}] {sel}")
        if t + R < 2 * G:
            item_issue(t + R)
        if t == tree_at_issue:
            tree_issue()
        if t == tree_at_proc:
            tree_process()
    st(3)
    A = vACC
    e("  s_nop 1")
    for i in range(12):
        e(f"  v_permlane32_swap_b32 v{A+i}, v{A+i+12}")
    e("  s_nop 1")
    for i in range(12):
        e(f"  v_add_f32 v{A+i}, v{A+i}, v{A+i+12}")
    e("  s_nop 1")
    for i in range(6):
        e(f"  v_permlane16_swap_b32 v{A+i}, v{A+i+6}")
    e("  s_nop 1")
    for i in range(6):
        e(f"  v_add_f32 v{A+i}, v{A+i}, v{A+i+6}")
    Y = vKT
    e("  s_nop 1")
    for i in range(3):
        e(f"  v_add_f32_dpp v{Y+i}, v{A+i}, v{A+i} row_ror:8 row_mask:0xf bank_mask:0x3")
    for i in range(3):
        e(f"  v_add_f32_dpp v{Y+i}, v{A+i+3}, v{A+i+3} row_ror:8 row_mask:0xf bank_mask:0xc")
    e(f"  v_mov_b32 v{Y+3}, v{vLSE}")
    e(f"  v_lshlrev_b32 v{vT}, 4, v0")
    e(f"  ds_write_b128 v{vT}, v[{Y}:{Y+3}]")
    e("  s_waitcnt lgkmcnt(0)")
    e("  s_barrier")
    e(f"  s_cmp_lg_u32 s{sWID}, 0")
    e("  s_cbranch_scc1 L_end")
    st(4)
    P = vRING
    for w in range(NW):
        e(f"  ds_read_b128 v[{P+4*w}:{P+4*w+3}], v{vT} offset:{w*1024}")
    e("  s_waitcnt lgkmcnt(0)")
    combine([P + 4 * w for w in range(NW)], NW, Y)
    e(f"  s_lshl_b32 s{sOK}, s{sSPL}, 10")
    e(f"  v_lshlrev_b32 v{vT+8}, 4, v0")
    if two:
        e(f"  buffer_store_dwordx4 v[{Y}:{Y+3}], v{vT+8}, s[{rWS}:{rWS+3}], s{sOK} offen")
        e(f"  s_cmp_lg_u32 s{sSPL}, 0")
        e("  s_cbranch_scc1 L_end")
        e(f"  s_lshl_b32 s{sT0}, s{sHEAD}, 10")
        e(f"  s_add_u32 s{sT0}, s{sT0}, {NWG*1024}")
        srd(rDBG, sWS, 1024, sT0)
        for i in range(4):
            e(f"  v_mov_b32 v{P+i}, v{vVT+i}")
        e(f"  buffer_store_dwordx4 v[{P}:{P+3}], v{vT+8}, s[{rDBG}:{rDBG+3}], 0 offen")
        e("L_end:")
        e("  s_endpgm")
    else:
        e(f"  buffer_store_dwordx4 v[{Y}:{Y+3}], v{vT+8}, s[{rWS}:{rWS+3}], s{sOK} offen {PF}")
        srd(rDBG, sDBG, 256)
        e(f"  s_lshl_b32 s{sT0}, s{sHEAD}, 2")
        e(f"  s_add_u32 s{sT0}, s{sT0}, 128")
        e(f"  v_mov_b32 v{vT+9}, s{sT0}")
        e(f"  v_mov_b32 v{vT+10}, 1")
        e("  s_waitcnt vmcnt(0)")
        st(5)
        e("  s_mov_b64 exec, 1")
        e(f"  buffer_atomic_add v{vT+10}, v{vT+9}, s[{rDBG}:{rDBG+3}], 0 offen sc0")
        e("  s_waitcnt vmcnt(0)")
        e(f"  v_readfirstlane_b32 s{sT0}, v{vT+10}")
        e("  s_mov_b64 exec, -1")
        st(6)
        e(f"  s_cmp_lg_u32 s{sT0}, {SPLITS-1}")
        e("  s_cbranch_scc1 L_fin")
        for s in range(SPLITS):
            e(f"  buffer_load_dwordx4 v[{P+4*s}:{P+4*s+3}], v{vT+8}, s[{rWS}:{rWS+3}], 0 offen offset:{(s%4)*1024} {PF}" if s < 4 else
              f"  buffer_load_dwordx4 v[{P+4*s}:{P+4*s+3}], v{vT+8}, s[{rWS}:{rWS+3}], s{sOK} offen offset:{(s%4)*1024} {PF}")
            if s % 4 == 3 and s + 1 < SPLITS:
                e(f"  s_mov_b32 s{sOK}, {(s+1)*1024}")
        PT = P + 4 * SPLITS
        for i in range(4):
            e(f"  v_mov_b32 v{PT+i}, v{vVT+i}")
        e("  s_waitcnt vmcnt(0)")
        combine([P + 4 * s for s in range(SPLITS + 1)], SPLITS + 1, Y)
        final_store(Y)
        e("L_fin:")
        if stamp == 2:
            e("  s_waitcnt vmcnt(0)")
            st(7)
            srd(rDBG, sDBG, 256)
            e("  s_waitcnt lgkmcnt(0)")
            e("  s_mov_b64 exec, 1")
            idx = 0
            for i in (0, 1, 2, 3, 7):
                for neg in (True, False):
                    e(f"  v_mov_b32 v{P}, s{70+2*i}")
                    if neg: e(f"  v_not_b32 v{P}, v{P}")
                    e(f"  buffer_atomic_umax v{P}, off, s[{rDBG}:{rDBG+3}], 0 offset:{idx*4}")
                    e("  s_waitcnt vmcnt(0)")
                    idx += 1
        elif stamp:
            e("  s_waitcnt vmcnt(0)")
            st(7)
            e(f"  s_lshl_b32 s{sT0}, s2, 6")
            e(f"  s_add_u32 s{sT0}, s{sT0}, 0x100000")
            srd(rDBG, sWS, 64, sT0)
            e("  s_getreg_b32 s69, hwreg(HW_REG_XCC_ID)")
            e("  s_waitcnt lgkmcnt(0)")
            for i in range(8):
                e(f"  v_mov_b32 v{P+i}, s{70+2*i}")
            e(f"  v_mov_b32 v{P+8}, s69")
            e("  s_getreg_b32 s69, hwreg(HW_REG_HW_ID)")
            e(f"  v_mov_b32 v{P+9}, s69")
            e("  s_mov_b64 exec, 1")
            e(f"  buffer_store_dwordx4 v[{P}:{P+3}], off, s[{rDBG}:{rDBG+3}], 0")
            e(f"  buffer_store_dwordx4 v[{P+4}:{P+7}], off, s[{rDBG}:{rDBG+3}], 0 offset:16")
            e(f"  buffer_store_dwordx4 v[{P+8}:{P+11}], off, s[{rDBG}:{rDBG+3}], 0 offset:32")
        e("L_end:")
        e("  s_endpgm")
    kernels = [(kname, nv)]
    if two:
        k2 = NAME + "_comb_kernel"
        header(k2)
        e(f"  s_cmp_ge_u32 s2, {H}")
        e("  s_cbranch_scc1 L_end2")
        e("  s_load_dwordx2 s[16:17], s[0:1], 48")
        e("  s_load_dwordx2 s[20:21], s[0:1], 64")
        e(f"  s_mul_i32 s{sT1}, s2, {ROW}")
        e(f"  s_lshl_b32 s{sT0}, s2, {10+lg}")
        out_offsets()
        e(f"  v_lshlrev_b32 v{vT+8}, 4, v0")
        e("  s_waitcnt lgkmcnt(0)")
        srd(rWS, sWS, SPLITS * 1024, sT0)
        P = vRING
        for s in range(SPLITS):
            if s % 4 == 0:
                e(f"  s_mov_b32 s{sOK}, {s*1024}")
            e(f"  buffer_load_dwordx4 v[{P+4*s}:{P+4*s+3}], v{vT+8}, s[{rWS}:{rWS+3}], s{sOK} offen offset:{(s%4)*1024}")
        e(f"  s_lshl_b32 s{sT0}, s2, 10")
        e(f"  s_add_u32 s{sT0}, s{sT0}, {NWG*1024}")
        srd(rDBG, sWS, 1024, sT0)
        PT = P + 4 * SPLITS
        e(f"  buffer_load_dwordx4 v[{PT}:{PT+3}], v{vT+8}, s[{rDBG}:{rDBG+3}], 0 offen")
        srd(rOUT, sOUT, ROW, sT1)
        e("  s_waitcnt vmcnt(0)")
        combine([P + 4 * s for s in range(SPLITS + 1)], SPLITS + 1, Y)
        final_store(Y)
        e("L_end2:")
        e("  s_endpgm")
        kernels.append((k2, nv))
    lds = max(NW * 1024, lds_pad)
    hdr = open("cdna_kernels/" + NAME + ".s.ref").read().split("; Override launch")[0]
    out = [hdr.rstrip("\n")]
    if two:
        out.append(f"; @launch kernel={kname} grid=({NWG},1,1) block=({NW*64},1,1) lds={lds}")
        out.append(f"; @launch kernel={kernels[1][0]} grid=({H},1,1) block=(64,1,1) lds=0")
    else:
        out.append(f"; @launch grid=({NWG},1,1) block=({NW*64},1,1) lds={lds}")
    out.append('.amdgcn_target "amdgcn-amd-amdhsa--gfx950"')
    out.append(".text")
    out += L
    out.append('.section .rodata,"a"')
    for kn, n in kernels:
        n = vgpr_cap or n
        out.append(".p2align 6")
        out.append(f".amdhsa_kernel {kn}")
        out.append(f"  .amdhsa_next_free_vgpr {n}")
        out.append(f"  .amdhsa_next_free_sgpr 96")
        out.append(f"  .amdhsa_accum_offset {(n+3)//4*4}")
        out.append("  .amdhsa_group_segment_fixed_size 0")
        out.append("  .amdhsa_kernarg_size 72")
        out.append("  .amdhsa_user_sgpr_count 2")
        out.append("  .amdhsa_user_sgpr_kernarg_segment_ptr 1")
        out.append("  .amdhsa_system_sgpr_workgroup_id_x 1")
        out.append(".end_amdhsa_kernel")
    return "\n".join(out) + "\n"

import struct
def f2h(x):
    return "0x%08x" % struct.unpack("<I", struct.pack("<f", x))[0]

if __name__ == "__main__":
    import ast
    outp = sys.argv[1]
    kw = {}
    for a in sys.argv[2:]:
        k, v = a.split("=", 1)
        try: v = ast.literal_eval(v)
        except Exception: pass
        kw[k] = v
    open(outp, "w").write(gen(**kw))
```

```python
import sys, math
NAME = "standalone__tree_speculative_verify_tree_attention_over_candidate_token_tree__decode"

def gen(NW=4, SPLITS=8, R=12, LF="nt", LFV=None, inter=True, two=False, lds_pad=0, stamp=False, PF="sc1", vgpr_cap=None, kfirst=True, extra=0, probe=None, pfac=10):
    if LFV is None: LFV = LF
    H, C, D = 32, 8192, 192
    ROW = D * 2
    HEADB = C * ROW
    KEYS_WG = C // SPLITS
    CHUNK = KEYS_WG * ROW
    G = KEYS_WG // NW // 8
    NWG = H * SPLITS
    c_log2 = (D ** -0.5) * math.log2(math.e)
    L = []
    e = L.append
    vQ = 4
    vS = vQ + 12
    vACC = vS + G
    assert vACC % 2 == 0
    vKT = (vACC + 24 + 3) // 4 * 4
    vVT = vKT + 12
    vMK = vVT + 3
    vOO = vMK + 1
    vT = vOO + 3
    vT += vT % 2
    vLSE = vT + 12
    vST = vLSE + 1
    vRING = (vST + 1 + 3) // 4 * 4
    nv = vRING + 12 * R
    assert nv <= 256, nv
    vOFF = 1; vC16 = 2; vW = 3
    sQ, sK, sV, sKT, sVT, sMK, sOUT, sDBG, sWS = 4, 6, 8, 10, 12, 14, 16, 18, 20
    rK, rV, rQ, rKT, rVT, rMK, rOUT, rWS, rDBG = 24, 28, 32, 36, 40, 44, 48, 52, 56
    sHEAD, sSPL, sT0, sT1, sOK, sC, sWID, sMASKHI = 60, 61, 62, 63, 64, 65, 66, 67
    sNEG = 68
    queue = []
    def issue(tag): queue.append(tag)
    def wait_for(tag):
        idx = max(i for i, t in enumerate(queue) if t == tag)
        n = len(queue) - 1 - idx
        assert n <= 63
        e(f"  s_waitcnt vmcnt({n})")
    kname = NAME + "_kernel"
    def header(kn):
        e(f".globl {kn}"); e(".p2align 8"); e(f".type {kn},@function"); e(f"{kn}:")
    def srd(r, slo, nbytes, addreg=None):
        if addreg is None:
            e(f"  s_mov_b32 s{r}, s{slo}"); e(f"  s_mov_b32 s{r+1}, s{slo+1}")
        else:
            e(f"  s_add_u32 s{r}, s{slo}, s{addreg}"); e(f"  s_addc_u32 s{r+1}, s{slo+1}, 0")
        e(f"  s_mov_b32 s{r+2}, {nbytes}"); e(f"  s_mov_b32 s{r+3}, 0x20000")
    def out_offsets():
        e(f"  v_and_b32 v{vT}, 63, v0")
        e(f"  v_lshrrev_b32 v{vT+1}, 3, v{vT}")
        e(f"  v_mul_u32_u24 v{vT+1}, 3, v{vT+1}")
        e(f"  v_and_b32 v{vT+2}, 7, v{vT}")
        e(f"  v_lshlrev_b32 v{vT+2}, 4, v{vT+2}")
        for i in range(3):
            e(f"  v_add_u32 v{vT+3}, {i}, v{vT+1}")
            e(f"  v_lshrrev_b32 v{vT+4}, 3, v{vT+3}")
            e(f"  v_lshlrev_b32 v{vT+4}, 7, v{vT+4}")
            e(f"  v_and_b32 v{vT+3}, 7, v{vT+3}")
            e(f"  v_lshlrev_b32 v{vT+3}, 1, v{vT+3}")
            e(f"  v_add3_u32 v{vOO+i}, v{vT+4}, v{vT+3}, v{vT+2}")
    def dots(dst, src):
        for i in range(12):
            c = "0" if i == 0 else f"v{dst}"
            e(f"  v_dot2_f32_bf16 v{dst}, v{src+i}, v{vQ+i}, {c}")
        e("  s_nop 2")
        e(f"  v_add_f32_dpp v{dst}, v{dst}, v{dst} quad_perm:[1,0,3,2] row_mask:0xf bank_mask:0xf")
        e("  s_nop 1")
        e(f"  v_add_f32_dpp v{dst}, v{dst}, v{dst} quad_perm:[2,3,0,1] row_mask:0xf bank_mask:0xf")
        e("  s_nop 1")
        e(f"  v_add_f32_dpp v{dst}, v{dst}, v{dst} row_half_mirror row_mask:0xf bank_mask:0xf")
    def allred(x, t, op):
        e("  s_nop 1")
        e(f"  {op}_dpp v{x}, v{x}, v{x} row_ror:8 row_mask:0xf bank_mask:0xf")
        e(f"  v_mov_b32 v{t}, v{x}")
        e("  s_nop 1")
        e(f"  v_permlane16_swap_b32 v{x}, v{t}")
        e("  s_nop 1")
        e(f"  {op} v{x}, v{x}, v{t}")
        e(f"  v_mov_b32 v{t}, v{x}")
        e("  s_nop 1")
        e(f"  v_permlane32_swap_b32 v{x}, v{t}")
        e("  s_nop 1")
        e(f"  {op} v{x}, v{x}, v{t}")
    def combine(parts, n, o):
        mx, sm, w = vT, vT + 1, vT + 2
        e(f"  v_max_f32 v{mx}, v{parts[0]+3}, v{parts[1]+3}")
        for p in parts[2:]:
            e(f"  v_max_f32 v{mx}, v{mx}, v{p+3}")
        for p in parts:
            e(f"  v_sub_f32 v{p+3}, v{p+3}, v{mx}")
        for p in parts:
            e(f"  v_exp_f32 v{p+3}, v{p+3}")
        e("  s_nop 0")
        e(f"  v_add_f32 v{sm}, v{parts[0]+3}, v{parts[1]+3}")
        for p in parts[2:]:
            e(f"  v_add_f32 v{sm}, v{sm}, v{p+3}")
        e(f"  v_rcp_f32 v{w}, v{sm}")
        e(f"  v_log_f32 v{sm}, v{sm}")
        for i in range(3):
            e(f"  v_mul_f32 v{vT+4+i}, v{parts[0]+i}, v{parts[0]+3}")
        for p in parts[1:]:
            for i in range(3):
                e(f"  v_fmac_f32 v{vT+4+i}, v{p+i}, v{p+3}")
        for i in range(3):
            e(f"  v_mul_f32 v{o+i}, v{vT+4+i}, v{w}")
        e(f"  v_add_f32 v{o+3}, v{sm}, v{mx}")
    def final_store(o):
        e(f"  v_cvt_pk_bf16_f32 v{o}, v{o}, v{o+1}")
        e(f"  v_cvt_pk_bf16_f32 v{o+2}, v{o+2}, v{o+2}")
        e(f"  buffer_store_short v{o}, v{vOO}, s[{rOUT}:{rOUT+3}], 0 offen")
        e(f"  buffer_store_short_d16_hi v{o}, v{vOO+1}, s[{rOUT}:{rOUT+3}], 0 offen")
        e(f"  buffer_store_short v{o+2}, v{vOO+2}, s[{rOUT}:{rOUT+3}], 0 offen")

    header(kname)
    e(f"  s_cmp_ge_u32 s2, {NWG}")
    e("  s_cbranch_scc1 L_end")
    e("  s_load_dwordx16 s[4:19], s[0:1], 0")
    e("  s_load_dwordx2 s[20:21], s[0:1], 64")
    def st(i, mode=None):
        if not stamp: return
        if (stamp == 3) != (mode == 3) and i != 7 and i != 0: return
        e(f"  s_memrealtime s[{70+2*i}:{71+2*i}]")
    st(0)
    lg = int(math.log2(SPLITS))
    e(f"  s_lshr_b32 s{sHEAD}, s2, {lg}")
    e(f"  s_and_b32 s{sSPL}, s2, {SPLITS-1}")
    e(f"  s_mul_i32 s{sT0}, s2, {CHUNK}")
    e(f"  s_mul_i32 s{sT1}, s{sHEAD}, {ROW}")
    e(f"  v_lshrrev_b32 v{vW}, 6, v0")
    e(f"  v_and_b32 v{vC16}, 7, v0")
    e(f"  v_lshlrev_b32 v{vC16}, 4, v{vC16}")
    e(f"  v_bfe_u32 v{vOFF}, v0, 3, 3")
    e(f"  v_mul_u32_u24 v{vOFF}, {ROW}, v{vOFF}")
    e(f"  v_add_u32 v{vOFF}, v{vOFF}, v{vC16}")
    wstride = 3072 if inter else G * 3072
    gstride = NW * 3072 if inter else 3072
    e(f"  s_mov_b32 s{sC}, {wstride}")
    e(f"  v_mul_lo_u32 v{vT}, v{vW}, s{sC}")
    e(f"  v_add_u32 v{vOFF}, v{vOFF}, v{vT}")
    e(f"  v_readfirstlane_b32 s{sWID}, v{vW}")
    out_offsets()
    e(f"  s_mov_b32 s{sMASKHI}, 0xffff0000")
    e("  s_waitcnt lgkmcnt(0)")
    st(1, 3)
    srd(rK, sK, CHUNK, sT0)
    srd(rQ, sQ, ROW, sT1)
    for j in range(3):
        e(f"  buffer_load_dwordx4 v[{vQ+4*j}:{vQ+4*j+3}], v{vC16}, s[{rQ}:{rQ+3}], 0 offen offset:{j*128}")
        issue('q')
    def item_issue(t):
        slot = vRING + 12 * (t % R)
        isK = t < G
        g = t if isK else t - G
        r = rK if isK else rV
        off = g * gstride
        if off == 0:
            so = "0"
        else:
            e(f"  s_mov_b32 s{sOK}, {off}"); so = f"s{sOK}"
        for j in range(3):
            e(f"  buffer_load_dwordx4 v[{slot+4*j}:{slot+4*j+3}], v{vOFF}, s[{r}:{r+3}], {so} offen offset:{j*128} {LF if isK else LFV}")
            issue(('it', t))
    for x in range(extra):
        slot = vRING + 12 * (x % R)
        g = x % G
        r = rK
        e(f"  s_mov_b32 s{sOK}, {g * gstride}")
        if x >= R:
            e(f"  s_waitcnt vmcnt({3*(R-1)})")
        for j in range(3):
            e(f"  buffer_load_dwordx4 v[{slot+4*j}:{slot+4*j+3}], v{vOFF}, s[{r}:{r+3}], s{sOK} offen offset:{j*128} {LF}")
    if extra: e("  s_waitcnt vmcnt(0)")
    npro = min(R, 2 * G)
    for t in range(min(npro, G)):
        item_issue(t)
        if t == 0: st(2, 3)
    st(3, 3)
    srd(rV, sV, CHUNK, sT0)
    for t in range(G, npro):
        item_issue(t)
    srd(rKT, sKT, ROW, sT1)
    srd(rVT, sVT, ROW, sT1)
    srd(rMK, sMK, 2)
    srd(rOUT, sOUT, ROW, sT1)
    e(f"  s_lshl_b32 s{sT0}, s{sHEAD}, {10+lg}")
    srd(rWS, sWS, SPLITS * 1024, sT0)
    def tree_issue():
        for j in range(3):
            e(f"  buffer_load_dwordx4 v[{vKT+4*j}:{vKT+4*j+3}], v{vC16}, s[{rKT}:{rKT+3}], 0 offen offset:{j*128}")
            issue('tree')
        for i in range(3):
            e(f"  buffer_load_ushort v{vVT+i}, v{vOO+i}, s[{rVT}:{rVT+3}], 0 offen")
            issue('tree')
        e(f"  buffer_load_ushort v{vMK}, off, s[{rMK}:{rMK+3}], 0")
        issue('tree')
    def tree_process():
        wait_for('tree')
        dots(vST, vKT)
        for i in range(3):
            e(f"  v_lshlrev_b32 v{vVT+i}, 16, v{vVT+i}")
        e(f"  v_lshlrev_b32 v{vMK}, 16, v{vMK}")
        e(f"  v_sub_f32 v{vMK}, 1.0, v{vMK}")
        e(f"  s_mov_b32 s{sNEG}, {f2h(-1.0e9 * math.log2(math.e))}")
        e(f"  v_mul_f32 v{vMK}, s{sNEG}, v{vMK}")
        e(f"  v_fma_f32 v{vMK}, v{vST}, s{sC}, v{vMK}")
    def softmax_mid():
        mx, t, l = vT, vT + 1, vT + 2
        e(f"  v_max_f32 v{mx}, v{vS}, v{vS+1}")
        for i in range(2, G, 2):
            e(f"  v_max3_f32 v{mx}, v{mx}, v{vS+i}, v{vS+i+1}")
        allred(mx, t, "v_max_f32")
        e(f"  s_mov_b32 s{sC}, {f2h(c_log2)}")
        e(f"  v_mul_f32 v{mx}, s{sC}, v{mx}")
        for i in range(G):
            e(f"  v_fma_f32 v{vS+i}, v{vS+i}, s{sC}, -v{mx}")
        for i in range(G):
            e(f"  v_exp_f32 v{vS+i}, v{vS+i}")
        e("  s_nop 0")
        e(f"  v_add_f32 v{l}, v{vS}, v{vS+1}")
        for i in range(2, G):
            e(f"  v_add_f32 v{l}, v{l}, v{vS+i}")
        allred(l, t, "v_add_f32")
        e(f"  v_rcp_f32 v{t}, v{l}")
        e(f"  v_log_f32 v{l}, v{l}")
        e("  s_nop 0")
        for i in range(G):
            e(f"  v_mul_f32 v{vS+i}, v{vS+i}, v{t}")
        e(f"  v_add_f32 v{vLSE}, v{l}, v{mx}")
    tree_at_issue = G - 1
    tree_at_proc = min(2 * G - 1, tree_at_issue + R + 1)
    for t in range(2 * G):
        slot = vRING + 12 * (t % R)
        wait_for(('it', t))
        if t == 0: st(1); st(4, 3)
        if t == 1: st(5, 3)
        if t == 4: st(6, 3)
        if t == G: st(2)
        if t < G:
            dots(vS + t, slot)
        else:
            g = t - G
            if g == 0:
                softmax_mid()
            p = vS + g
            pe = p - (p % 2)
            sel = "op_sel_hi:[1,0,1]" if p % 2 == 0 else "op_sel:[0,1,0] op_sel_hi:[1,1,1]"
            for i in range(12):
                tt = vT + 4 + 2 * (i % 4)
                e(f"  v_lshlrev_b32 v{tt}, 16, v{slot+i}")
                e(f"  v_and_b32 v{tt+1}, s{sMASKHI}, v{slot+i}")
                if g == 0:
                    e(f"  v_pk_mul_f32 v[{vACC+2*i}:{vACC+2*i+1}], v[{tt}:{tt+1}], v[{pe}:{pe+1}] " + sel.replace(",1]", "]").replace(",0]", "]") if False else
                      f"  v_pk_mul_f32 v[{vACC+2*i}:{vACC+2*i+1}], v[{tt}:{tt+1}], v[{pe}:{pe+1}] " + ("op_sel_hi:[1,0]" if p % 2 == 0 else "op_sel:[0,1] op_sel_hi:[1,1]"))
                else:
                    e(f"  v_pk_fma_f32 v[{vACC+2*i}:{vACC+2*i+1}], v[{tt}:{tt+1}], v[{pe}:{pe+1}], v[{vACC+2*i}:{vACC+2*i+1}] {sel}")
        if t + R < 2 * G:
            item_issue(t + R)
        if t == tree_at_issue:
            tree_issue()
        if t == tree_at_proc:
            tree_process()
    st(3)
    A = vACC
    e("  s_nop 1")
    for i in range(12):
        e(f"  v_permlane32_swap_b32 v{A+i}, v{A+i+12}")
    e("  s_nop 1")
    for i in range(12):
        e(f"  v_add_f32 v{A+i}, v{A+i}, v{A+i+12}")
    e("  s_nop 1")
    for i in range(6):
        e(f"  v_permlane16_swap_b32 v{A+i}, v{A+i+6}")
    e("  s_nop 1")
    for i in range(6):
        e(f"  v_add_f32 v{A+i}, v{A+i}, v{A+i+6}")
    Y = vKT
    e("  s_nop 1")
    for i in range(3):
        e(f"  v_add_f32_dpp v{Y+i}, v{A+i}, v{A+i} row_ror:8 row_mask:0xf bank_mask:0x3")
    for i in range(3):
        e(f"  v_add_f32_dpp v{Y+i}, v{A+i+3}, v{A+i+3} row_ror:8 row_mask:0xf bank_mask:0xc")
    e(f"  v_mov_b32 v{Y+3}, v{vLSE}")
    e(f"  v_lshlrev_b32 v{vT}, 4, v0")
    e(f"  ds_write_b128 v{vT}, v[{Y}:{Y+3}]")
    e("  s_waitcnt lgkmcnt(0)")
    e("  s_barrier")
    e(f"  s_cmp_lg_u32 s{sWID}, 0")
    e("  s_cbranch_scc1 L_end")
    st(4)
    P = vRING
    for w in range(NW):
        e(f"  ds_read_b128 v[{P+4*w}:{P+4*w+3}], v{vT} offset:{w*1024}")
    e("  s_waitcnt lgkmcnt(0)")
    combine([P + 4 * w for w in range(NW)], NW, Y)
    e(f"  s_lshl_b32 s{sOK}, s{sSPL}, 10")
    e(f"  v_lshlrev_b32 v{vT+8}, 4, v0")
    if two:
        e(f"  buffer_store_dwordx4 v[{Y}:{Y+3}], v{vT+8}, s[{rWS}:{rWS+3}], s{sOK} offen")
        e(f"  s_cmp_lg_u32 s{sSPL}, 0")
        e("  s_cbranch_scc1 L_end")
        e(f"  s_lshl_b32 s{sT0}, s{sHEAD}, 10")
        e(f"  s_add_u32 s{sT0}, s{sT0}, {NWG*1024}")
        srd(rDBG, sWS, 1024, sT0)
        for i in range(4):
            e(f"  v_mov_b32 v{P+i}, v{vVT+i}")
        e(f"  buffer_store_dwordx4 v[{P}:{P+3}], v{vT+8}, s[{rDBG}:{rDBG+3}], 0 offen")
        e("L_end:")
        e("  s_endpgm")
    else:
        e(f"  buffer_store_dwordx4 v[{Y}:{Y+3}], v{vT+8}, s[{rWS}:{rWS+3}], s{sOK} offen {PF}")
        srd(rDBG, sDBG, 256)
        e(f"  s_lshl_b32 s{sT0}, s{sHEAD}, 2")
        e(f"  s_add_u32 s{sT0}, s{sT0}, 128")
        e(f"  v_mov_b32 v{vT+9}, s{sT0}")
        e(f"  v_mov_b32 v{vT+10}, 1")
        e("  s_waitcnt vmcnt(0)")
        st(5)
        e("  s_mov_b64 exec, 1")
        e(f"  buffer_atomic_add v{vT+10}, v{vT+9}, s[{rDBG}:{rDBG+3}], 0 offen sc0")
        e("  s_waitcnt vmcnt(0)")
        e(f"  v_readfirstlane_b32 s{sT0}, v{vT+10}")
        e("  s_mov_b64 exec, -1")
        st(6)
        e(f"  s_cmp_lg_u32 s{sT0}, {SPLITS-1}")
        e("  s_cbranch_scc1 L_fin")
        for s in range(SPLITS):
            e(f"  buffer_load_dwordx4 v[{P+4*s}:{P+4*s+3}], v{vT+8}, s[{rWS}:{rWS+3}], 0 offen offset:{(s%4)*1024} {PF}" if s < 4 else
              f"  buffer_load_dwordx4 v[{P+4*s}:{P+4*s+3}], v{vT+8}, s[{rWS}:{rWS+3}], s{sOK} offen offset:{(s%4)*1024} {PF}")
            if s % 4 == 3 and s + 1 < SPLITS:
                e(f"  s_mov_b32 s{sOK}, {(s+1)*1024}")
        PT = P + 4 * SPLITS
        for i in range(4):
            e(f"  v_mov_b32 v{PT+i}, v{vVT+i}")
        e("  s_waitcnt vmcnt(0)")
        combine([P + 4 * s for s in range(SPLITS + 1)], SPLITS + 1, Y)
        final_store(Y)
        e("L_fin:")
        if stamp == 2:
            e("  s_waitcnt vmcnt(0)")
            st(7)
            srd(rDBG, sDBG, 256)
            e("  s_waitcnt lgkmcnt(0)")
            e("  s_mov_b64 exec, 1")
            idx = 0
            for i in (0, 1, 2, 3, 7):
                for neg in (True, False):
                    e(f"  v_mov_b32 v{P}, s{70+2*i}")
                    if neg: e(f"  v_not_b32 v{P}, v{P}")
                    e(f"  buffer_atomic_umax v{P}, off, s[{rDBG}:{rDBG+3}], 0 offset:{idx*4}")
                    e("  s_waitcnt vmcnt(0)")
                    idx += 1
        elif stamp:
            e("  s_waitcnt vmcnt(0)")
            st(7)
            e(f"  s_lshl_b32 s{sT0}, s2, 6")
            e(f"  s_add_u32 s{sT0}, s{sT0}, 0x100000")
            srd(rDBG, sWS, 64, sT0)
            e("  s_getreg_b32 s69, hwreg(HW_REG_XCC_ID)")
            e("  s_waitcnt lgkmcnt(0)")
            for i in range(8):
                e(f"  v_mov_b32 v{P+i}, s{70+2*i}")
            e(f"  v_mov_b32 v{P+8}, s69")
            e("  s_getreg_b32 s69, hwreg(HW_REG_HW_ID)")
            e(f"  v_mov_b32 v{P+9}, s69")
            e("  s_mov_b64 exec, 1")
            e(f"  buffer_store_dwordx4 v[{P}:{P+3}], off, s[{rDBG}:{rDBG+3}], 0")
            e(f"  buffer_store_dwordx4 v[{P+4}:{P+7}], off, s[{rDBG}:{rDBG+3}], 0 offset:16")
            e(f"  buffer_store_dwordx4 v[{P+8}:{P+11}], off, s[{rDBG}:{rDBG+3}], 0 offset:32")
        e("L_end:")
        e("  s_endpgm")
    kernels = [(kname, nv)]
    if two:
        k2 = NAME + "_comb_kernel"
        header(k2)
        e(f"  s_cmp_ge_u32 s2, {H}")
        e("  s_cbranch_scc1 L_end2")
        e("  s_load_dwordx2 s[16:17], s[0:1], 48")
        e("  s_load_dwordx2 s[20:21], s[0:1], 64")
        e(f"  s_mul_i32 s{sT1}, s2, {ROW}")
        e(f"  s_lshl_b32 s{sT0}, s2, {10+lg}")
        out_offsets()
        e(f"  v_lshlrev_b32 v{vT+8}, 4, v0")
        e("  s_waitcnt lgkmcnt(0)")
        srd(rWS, sWS, SPLITS * 1024, sT0)
        P = vRING
        for s in range(SPLITS):
            if s % 4 == 0:
                e(f"  s_mov_b32 s{sOK}, {s*1024}")
            e(f"  buffer_load_dwordx4 v[{P+4*s}:{P+4*s+3}], v{vT+8}, s[{rWS}:{rWS+3}], s{sOK} offen offset:{(s%4)*1024}")
        e(f"  s_lshl_b32 s{sT0}, s2, 10")
        e(f"  s_add_u32 s{sT0}, s{sT0}, {NWG*1024}")
        srd(rDBG, sWS, 1024, sT0)
        PT = P + 4 * SPLITS
        e(f"  buffer_load_dwordx4 v[{PT}:{PT+3}], v{vT+8}, s[{rDBG}:{rDBG+3}], 0 offen")
        srd(rOUT, sOUT, ROW, sT1)
        e("  s_waitcnt vmcnt(0)")
        combine([P + 4 * s for s in range(SPLITS + 1)], SPLITS + 1, Y)
        final_store(Y)
        e("L_end2:")
        e("  s_endpgm")
        kernels.append((k2, nv))
    if probe is not None:
        pi, pop = probe
        k3 = NAME + "_probe_kernel"
        header(k3)
        e("  s_cmp_ge_u32 s2, 1")
        e("  s_cbranch_scc1 L_end3")
        e("  s_load_dwordx2 s[20:21], s[0:1], 64")
        e("  v_lshlrev_b32 v1, 6, v0")
        e("  s_mov_b32 s62, 0x100000")
        e("  s_waitcnt lgkmcnt(0)")
        srd(24, 20, NWG * 64, 62)
        nld = NWG // 64
        for i in range(nld):
            e(f"  s_mov_b32 s63, {i*4096}")
            e(f"  buffer_load_dword v{4+2*i}, v1, s[24:27], s63 offen sc1")
            e(f"  buffer_load_dword v{5+2*i}, v1, s[24:27], s63 offen offset:{pi*4} sc1")
        e("  s_waitcnt vmcnt(0)")
        opv = "v_min_u32" if pop == "min" else "v_max_u32"
        ops = "s_min_u32" if pop == "min" else "s_max_u32"
        for i in range(1, nld):
            e(f"  v_min_u32 v4, v4, v{4+2*i}")
            e(f"  {opv} v5, v5, v{5+2*i}")
        e("  s_nop 1")
        e("  v_readlane_b32 s30, v4, 0")
        e("  v_readlane_b32 s31, v5, 0")
        for l in range(1, 64):
            e(f"  v_readlane_b32 s32, v4, {l}")
            e(f"  v_readlane_b32 s33, v5, {l}")
            e("  s_min_u32 s30, s30, s32")
            e(f"  {ops} s31, s31, s33")
        e("  s_sub_u32 s31, s31, s30")
        e(f"  s_mul_i32 s31, s31, {pfac}")
        e("  s_memrealtime s[34:35]")
        e("  s_waitcnt lgkmcnt(0)")
        e("L_spin:")
        e("  s_memrealtime s[36:37]")
        e("  s_waitcnt lgkmcnt(0)")
        e("  s_sub_u32 s38, s36, s34")
        e("  s_cmp_lt_u32 s38, s31")
        e("  s_cbranch_scc1 L_spin")
        e("L_end3:")
        e("  s_endpgm")
        kernels.append((k3, 32))
    lds = max(NW * 1024, lds_pad)
    hdr = open("cdna_kernels/" + NAME + ".s.ref").read().split("; Override launch")[0]
    out = [hdr.rstrip("\n")]
    if probe is not None:
        out.append(f"; @launch kernel={kname} grid=({NWG},1,1) block=({NW*64},1,1) lds={lds}")
        out.append(f"; @launch kernel={kernels[1][0]} grid=(1,1,1) block=(64,1,1) lds=0")
    elif two:
        out.append(f"; @launch kernel={kname} grid=({NWG},1,1) block=({NW*64},1,1) lds={lds}")
        out.append(f"; @launch kernel={kernels[1][0]} grid=({H},1,1) block=(64,1,1) lds=0")
    else:
        out.append(f"; @launch grid=({NWG},1,1) block=({NW*64},1,1) lds={lds}")
    out.append('.amdgcn_target "amdgcn-amd-amdhsa--gfx950"')
    out.append(".text")
    out += L
    out.append('.section .rodata,"a"')
    for kn, n in kernels:
        n = vgpr_cap or n
        out.append(".p2align 6")
        out.append(f".amdhsa_kernel {kn}")
        out.append(f"  .amdhsa_next_free_vgpr {n}")
        out.append(f"  .amdhsa_next_free_sgpr 96")
        out.append(f"  .amdhsa_accum_offset {(n+3)//4*4}")
        out.append("  .amdhsa_group_segment_fixed_size 0")
        out.append("  .amdhsa_kernarg_size 72")
        out.append("  .amdhsa_user_sgpr_count 2")
        out.append("  .amdhsa_user_sgpr_kernarg_segment_ptr 1")
        out.append("  .amdhsa_system_sgpr_workgroup_id_x 1")
        out.append(".end_amdhsa_kernel")
    return "\n".join(out) + "\n"

import struct
def f2h(x):
    return "0x%08x" % struct.unpack("<I", struct.pack("<f", x))[0]

if __name__ == "__main__":
    import ast
    outp = sys.argv[1]
    kw = {}
    for a in sys.argv[2:]:
        k, v = a.split("=", 1)
        try: v = ast.literal_eval(v)
        except Exception: pass
        kw[k] = v
    open(outp, "w").write(gen(**kw))
```
